```python
import torch

def _softmax(x, axis=-1):
    return torch.softmax(x, dim=axis)
def _gelu(x):
    return torch.nn.functional.gelu(x, approximate="tanh")
def _silu(x):
    return torch.nn.functional.silu(x)
def _sigmoid(x):
    return torch.sigmoid(x)
def _layernorm(x, axis=-1, eps=1e-5):
    m = x.mean(dim=axis, keepdim=True)
    v = x.var(dim=axis, keepdim=True, unbiased=False)
    return (x - m) / torch.sqrt(v + eps)
def _scatter_add(tgt, idx, src, axis=0):
    return tgt.clone().index_add_(axis, idx, src)
def _segment_sum(src, seg, n):
    out = torch.zeros((n,) + src.shape[1:], dtype=src.dtype)
    return out.index_add_(0, seg, src)
def _pad(x, pw):
    flat = tuple(v for pair in reversed(pw) for v in pair)
    return torch.nn.functional.pad(x, flat)

kernel_name = 'interleave_layers__spectral_gfnet__softmax_full_mha__prompt'

def setup_inputs():

    _w = (lambda a: (lambda t: t.to(torch.bfloat16) if t.is_floating_point() else t)(torch.as_tensor(a)))
    def _A_setup():
        B, S, D = 1, 2048, 576
        Df = D // 2 + 1
        return {
            "x": _w((lambda *s: torch.randn(*s, dtype=torch.bfloat16) * 0.05)(B, S, D)),
            "w_r": _w((lambda *s: torch.randn(*s, dtype=torch.bfloat16) * 1.6)(S, Df) * 0.02),
            "w_i": _w((lambda *s: torch.randn(*s, dtype=torch.bfloat16) * 1.6)(S, Df) * 0.02),
        }
    _A_in = _A_setup()

    def _B_setup():
        B, S, D = 1, 2048, 576
        return {
            "x": _w((lambda *s: torch.randn(*s, dtype=torch.bfloat16) * 0.05)(B, S, D)),
            "wqkv": _w((lambda *s: torch.randn(*s, dtype=torch.bfloat16) * 0.05)(D, 3 * D)),
            "wo": _w((lambda *s: torch.randn(*s, dtype=torch.bfloat16) * 0.05)(D, D)),
        }
    _B_in = _B_setup()

    return {
        "A_x": _A_in["x"],
        "A_w_r": _A_in["w_r"],
        "A_w_i": _A_in["w_i"],
        "B_x": _B_in["x"],
        "B_wqkv": _B_in["wqkv"],
        "B_wo": _B_in["wo"],
    }

def reference(A_x, A_w_r, A_w_i, B_x, B_wqkv, B_wo):
    def _A_ref(x, w_r, w_i):
        B, S, D = x.shape
        X = (lambda x, axes=(-2,-1): torch.fft.rfft2(x.float(), dim=axes))(x, axes=(-2, -1))
        W = w_r + 1j * w_i
        X = X * W
        y = (lambda x, s, axes=(-2,-1): torch.fft.irfft2(x, s=s, dim=axes).to(torch.bfloat16))(X, (S, D), axes=(-2, -1))
        return y

    def _B_ref(x, wqkv, wo):
        B, S, D = x.shape
        H = 32; Dh = D // H
        qkv = (lambda x, *d: x.permute(*d))((x @ wqkv).reshape(B, S, 3, H, Dh), 2, 0, 3, 1, 4)
        q, k, v = qkv[0], qkv[1], qkv[2]
        scale = Dh ** -0.5
        scores = torch.einsum("bhqd,bhkd->bhqk", q, k) * scale
        p = _softmax(scores, axis=-1)
        o = torch.einsum("bhqk,bhkd->bhqd", p, v)
        return (lambda x, *d: x.permute(*d))(o, 0, 2, 1, 3).reshape(B, S, D) @ wo

    x = A_x
    x = x + _A_ref(_layernorm(x, axis=-1), A_w_r, A_w_i)
    x = x + _B_ref(_layernorm(x, axis=-1), B_wqkv, B_wo)
    x = x + _A_ref(_layernorm(x, axis=-1), A_w_r, A_w_i)
    x = x + _B_ref(_layernorm(x, axis=-1), B_wqkv, B_wo)
    return x
```

```python
import re

TRANS = ("v_exp_", "v_log_", "v_rcp_", "v_rsq_", "v_sqrt_", "v_sin_", "v_cos_")
_reg_re = re.compile(r"^(-|\|)?(v|s|a)(\d+)\|?$")
_rng_re = re.compile(r"^(-|\|)?(v|s|a)\[(\d+):(\d+)\]\|?$")


def regs_of(op):
    op = op.strip()
    m = _reg_re.match(op)
    if m:
        return {(m.group(2), int(m.group(3)))}
    m = _rng_re.match(op)
    if m:
        return {(m.group(2), i) for i in range(int(m.group(3)), int(m.group(4)) + 1)}
    if op in ("vcc",):
        return {("s", 106), ("s", 107)}
    if op == "vcc_lo":
        return {("s", 106)}
    if op == "vcc_hi":
        return {("s", 107)}
    if op == "exec":
        return {("x", 0)}
    if op == "m0":
        return {("m", 0)}
    return set()


def split_ops(s):
    out, depth, cur = [], 0, ""
    for ch in s:
        if ch == "[":
            depth += 1
        if ch == "]":
            depth -= 1
        if ch == "," and depth == 0:
            out.append(cur.strip())
            cur = ""
        else:
            cur += ch
    if cur.strip():
        out.append(cur.strip())
    return out


class Ins:
    __slots__ = ("txt", "mn", "kind", "dst", "src", "passes", "ops", "dpp", "srcC", "srcAB", "lds", "wide", "opsel")

    def __init__(self, txt):
        self.txt = txt
        t = txt.split(";")[0].strip()
        self.kind = None
        self.dst = set()
        self.src = set()
        self.passes = 0
        self.dpp = False
        self.srcC = set()
        self.srcAB = set()
        self.lds = False
        self.wide = False
        self.opsel = False
        if not t or t.startswith("."):
            self.kind = "dir"
            self.mn = ""
            return
        if t.endswith(":"):
            self.kind = "label"
            self.mn = t[:-1]
            return
        parts = t.split(None, 1)
        mn = parts[0]
        self.mn = mn
        rest = parts[1] if len(parts) > 1 else ""
        ops = split_ops(rest)
        mods = ""
        if ops:
            lp = ops[-1].split(None, 1)
            ops[-1] = lp[0]
            if len(lp) > 1:
                mods = lp[1]
        self.ops = ops
        R = [regs_of(o) for o in ops]
        if mn.startswith("v_mfma"):
            self.kind = "mfma"
            self.passes = 8 if "32x32" in mn else 4
            self.dst = R[0]
            self.srcAB = R[1] | R[2]
            self.srcC = R[3]
            self.src = self.srcAB | self.srcC
        elif mn.startswith("v_"):
            self.kind = "valu"
            if mn.startswith("v_permlane"):
                self.dst = R[0] | R[1]
                self.src = R[0] | R[1]
            elif mn == "v_nop":
                pass
            else:
                self.dst = R[0]
                self.src = set().union(*R[1:]) if len(R) > 1 else set()
                if mn.startswith(("v_fmac", "v_dot2c", "v_pk_fmac", "v_mac")):
                    self.src |= R[0]
                if mn.startswith("v_cndmask") and len(ops) == 3:
                    self.src |= regs_of("vcc")
                if "_co_" in mn:
                    raise ValueError("carry ops unsupported: " + txt)
            if any(k in mods for k in ("quad_perm", "row_", "wave_", "bank_mask", "row_mask")):
                self.dpp = True
                self.src |= R[0]
            if "dst_sel" in mods or ("op_sel:" in mods and not mn.startswith("v_pk")):
                self.opsel = True
        elif mn.startswith("ds_"):
            self.kind = "ds"
            if mn.startswith(("ds_read", "ds_bpermute", "ds_permute", "ds_swizzle")):
                self.dst = R[0]
                self.src = set().union(*R[1:]) if len(R) > 1 else set()
            else:
                self.src = set().union(*R)
            if "addtid" in mn:
                self.lds = True
        elif mn.startswith(("buffer_", "global_")):
            self.kind = "vmem"
            toks = mods.split()
            if "lds" in toks:
                self.lds = True
                self.src = set().union(*R)
            elif "_load" in mn:
                self.dst = R[0]
                self.src = set().union(*R[1:])
            else:
                self.src = set().union(*R) if R else set()
                if mn.endswith(("x3", "x4")):
                    self.wide = True
                    self.srcC = R[0] if mn.startswith("buffer_") else R[1]
        elif mn.startswith("s_"):
            self.kind = "salu"
            if mn in ("s_nop", "s_waitcnt", "s_barrier", "s_endpgm", "s_setprio", "s_sleep") or mn.startswith(("s_cbranch", "s_branch", "s_cmp", "s_bitcmp")):
                self.src = set().union(*R) if R else set()
            else:
                self.dst = R[0] if R else set()
                self.src = set().union(*R[1:]) if len(R) > 1 else set()
                if "saveexec" in mn:
                    self.dst = self.dst | {("x", 0)}
        else:
            raise ValueError("unknown instr: " + txt)

    def states(self):
        if self.kind in ("dir", "label"):
            return 0
        if self.mn == "s_nop":
            return int(self.ops[0], 0) + 1
        return 1


def need(p, c):
    n = 0
    if p.kind == "valu":
        vd = {r for r in p.dst if r[0] in "va"}
        sd = {r for r in p.dst if r[0] == "s"}
        if c.kind == "mfma" and vd & c.src:
            n = max(n, 3 if p.mn.startswith("v_dot") else 2)
        if c.kind == "valu":
            if vd & c.src:
                if p.mn.startswith(TRANS) and not c.mn.startswith(TRANS):
                    n = max(n, 1)
                if p.mn.startswith(TRANS) and c.mn.startswith(TRANS):
                    n = max(n, 1)
                if c.mn.startswith(("v_readlane", "v_readfirstlane")):
                    n = max(n, 1)
                if c.dpp or c.mn.startswith("v_permlane"):
                    n = max(n, 2)
                if p.opsel:
                    n = max(n, 1)
            if p.mn.startswith("v_dot") and (vd & (c.src | c.dst)):
                if c.mn == p.mn and len(c.ops) == 4 and not (vd & (regs_of(c.ops[1]) | regs_of(c.ops[2]))):
                    pass
                else:
                    n = max(n, 3)
            if sd & c.src:
                n = max(n, 4 if c.mn.startswith(("v_readlane", "v_writelane")) else 2)
        if c.kind in ("vmem", "ds"):
            if sd & c.src:
                n = max(n, 5)
            if p.mn.startswith("v_dot") and vd & c.src:
                n = max(n, 3)
            if p.mn.startswith(TRANS) and vd & c.src:
                n = max(n, 1)
        if c.kind == "salu" and sd & c.src:
            n = max(n, 1)
    if p.kind == "mfma":
        big = 12 if p.passes == 8 else 8
        if c.kind == "mfma":
            if p.dst & c.srcAB:
                n = max(n, big)
            if p.dst & c.srcC:
                if not (p.dst == c.srcC and p.passes == c.passes):
                    n = max(n, big - 2)
            elif p.dst & c.dst:
                n = max(n, big - 2)
        elif c.kind == "valu":
            if p.dst & (c.src | c.dst):
                n = max(n, big)
            if p.srcC & c.dst:
                n = max(n, 7 if p.passes == 8 else 3)
        elif c.kind in ("vmem", "ds"):
            if p.dst & (c.src | c.dst):
                n = max(n, big)
            if p.srcC & c.dst:
                n = max(n, 7 if p.passes == 8 else 3)
    if p.kind == "vmem" and p.wide:
        if p.srcC & c.dst:
            n = max(n, 2 if c.kind in ("valu", "mfma") else 1)
    if p.kind == "salu" and ("m", 0) in p.dst and c.lds:
        n = max(n, 1)
    if p.kind == "salu" and ("x", 0) in p.dst and c.kind == "valu" and c.dpp:
        n = max(n, 1)
    return n


WIN = 14


def pad(lines):
    ins = [Ins(l) for l in lines]
    out = []
    hist = []

    def required(hist, c):
        req = 0
        dist = 0
        for p in reversed(hist):
            if dist >= WIN:
                break
            r = need(p, c) - dist
            req = max(req, r)
            dist += p.states()
        return req

    branch_hist = []
    for i in ins:
        if i.kind in ("dir", "label"):
            out.append(i)
            continue
        r = required(hist, i)
        if r > 0:
            nop = Ins(f"  s_nop {r - 1}")
            out.append(nop)
            hist.append(nop)
        out.append(i)
        hist.append(i)
        hist = hist[-WIN - 2:]
        if i.mn.startswith(("s_cbranch", "s_branch")):
            branch_hist.append((len(out) - 1, i.ops[0], list(hist)))
        if i.mn in ("s_branch", "s_endpgm"):
            hist = []
    labels = {x.mn: k for k, x in enumerate(out) if x.kind == "label"}
    inserts = {}
    for (bi, tgt, h) in branch_hist:
        if tgt not in labels:
            continue
        k = labels[tgt]
        h = list(h)
        worst = 0
        cnt = 0
        extra = 0
        while k < len(out) and cnt < WIN:
            c = out[k]
            k += 1
            if c.kind in ("dir", "label"):
                continue
            r = required(h, c)
            worst = max(worst, r)
            h.append(c)
            cnt += c.states()
            if c.mn in ("s_branch", "s_endpgm"):
                break
        if worst > 0:
            inserts[bi] = worst
    res = []
    for k, x in enumerate(out):
        if k in inserts:
            res.append(f"  s_nop {inserts[k] - 1}")
        res.append(x.txt)
    return res


class A:
    def __init__(self):
        self.L = []

    def __call__(self, txt):
        for l in txt.split("\n"):
            l = l.strip()
            if not l:
                continue
            if l.endswith(":") or l.startswith("."):
                self.L.append(l)
            else:
                self.L.append("  " + l)

    def text(self):
        return "\n".join(pad(self.L)) + "\n"


def vr(b, n=1):
    return f"v{b}" if n == 1 else f"v[{b}:{b + n - 1}]"


def sr(b, n=1):
    return f"s{b}" if n == 1 else f"s[{b}:{b + n - 1}]"
```

```python
import numpy as np
from asmlib import A, vr, sr

N = 576
S = 2048
UB = 0x000000
WT = 0x240000
WP = 0x480000
WOP = 0x6C0000
WOT = 0x780000
SSP = 0x840000
KMX = 0x850000
QI = 0x880000
QX = 0xA80000
KV = 0xB00000
KVS = 0x26000
OB = 0x1000000
OX = 0x1200000
WS_END = 0x1300000

CH_K0, CH_K1, CH_K2, CH_V = 0, 2048, 4096, 4608
VP = 304
CH = 4608 + 16 * VP
KV_BYTES = 16 * CH

EPS = 1e-5


def f32bits(x):
    return int(np.array([x], np.float32).view(np.uint32)[0])


def bf16bits(x):
    u = int(np.array([x], np.float32).view(np.uint32)[0])
    return ((u + 0x7FFF + ((u >> 16) & 1)) >> 16) & 0xFFFF


def s_of_p(p):
    w, t, g, c, r = p >> 9, (p >> 8) & 1, (p >> 6) & 3, (p >> 2) & 15, p & 3
    return 32 * (16 * w + 4 * g + r) + 16 * t + c


def cmap():
    m = []
    for hp in range(16):
        hA, hB = 2 * hp, 2 * hp + 1
        for hd in (hA, hB):
            for rho in range(32):
                a, h, b = rho >> 3, (rho >> 2) & 1, rho & 3
                if a < 2:
                    m.append((0 * 576 + hd * 18 + 8 * h + 4 * a + b, 1))
                else:
                    m.append((1 * 576 + hd * 18 + 8 * h + 4 * (a - 2) + b, 0))
        for c in range(32):
            hd = hA if c < 16 else hB
            m.append((2 * 576 + hd * 18 + (c & 15), 0))
        for rho in range(32):
            a, h, b = rho >> 3, (rho >> 2) & 1, rho & 3
            hd = hB if h else hA
            if a == 0:
                m.append(((b >> 1) * 576 + hd * 18 + 16 + (b & 1), 1 if b < 2 else 0))
            elif a == 1 and b < 2:
                m.append((2 * 576 + hd * 18 + 16 + b, 0))
            else:
                m.append((-1, 0))
    return m


def row_of_c2(c2):
    if c2 < 512:
        return 18 * (c2 >> 4) + (c2 & 15)
    return 18 * ((c2 - 512) >> 1) + 16 + (c2 & 1)


QSCALE = 18 ** -0.5 * np.log2(np.e)


class VM:
    def __init__(self, a):
        self.a = a
        self.n = 0

    def issue(self, k=1):
        self.n += k
        return self.n

    def wait(self, mark):
        pend = self.n - mark
        self.a(f"s_waitcnt vmcnt({min(pend, 63)})")


def prologue(a, grid, name):
    a(f"""
    s_cmp_ge_u32 s2, {grid}
    s_cbranch_scc1 {name}_exit
    s_load_dwordx16 s[4:19], s[0:1], 0
    s_load_dwordx2 s[20:21], s[0:1], 64
    v_lshrrev_b32 v4, 6, v0
    v_and_b32 v1, 63, v0
    v_readfirstlane_b32 s40, v4
    v_and_b32 v2, 31, v0
    v_bfe_u32 v3, v0, 5, 1
    """)


def srd(a, d, base, nbytes, off=0):
    if off:
        a(f"s_add_u32 s{d}, s{base}, {off}\n s_addc_u32 s{d + 1}, s{base + 1}, 0")
    else:
        a(f"s_mov_b32 s{d}, s{base}\n s_mov_b32 s{d + 1}, s{base + 1}")
    a(f"s_mov_b32 s{d + 2}, {nbytes}\n s_mov_b32 s{d + 3}, 0x20000")


def srd_tab(a, d, sym, nbytes):
    a(f"""
    s_getpc_b64 s[{d}:{d + 1}]
    s_add_u32 s{d}, s{d}, {sym}@rel32@lo+4
    s_addc_u32 s{d + 1}, s{d + 1}, {sym}@rel32@hi+12
    s_mov_b32 s{d + 2}, {nbytes}
    s_mov_b32 s{d + 3}, 0x20000
    """)


def kd(name, vgpr=256, sgpr=102):
    acc = (vgpr + 3) // 4 * 4
    return f""".p2align 6
.amdhsa_kernel {name}
  .amdhsa_next_free_vgpr {vgpr}
  .amdhsa_next_free_sgpr {sgpr}
  .amdhsa_accum_offset {acc}
  .amdhsa_group_segment_fixed_size 0
  .amdhsa_kernarg_size 72
  .amdhsa_user_sgpr_count 2
  .amdhsa_user_sgpr_kernarg_segment_ptr 1
  .amdhsa_system_sgpr_workgroup_id_x 1
.end_amdhsa_kernel
"""


def khead(name):
    return f".globl {name}\n.p2align 8\n.type {name},@function\n{name}:\n"


ACC0 = 16
RING0 = 112
RED_BYTES = 4 * 3 * 6 * 1024


def gemm(a, vm, steps, depth, stage0=None, after_initial=None, ldsbase=None):
    n = len(steps)
    marks = [None] * n
    for i in range(min(depth, n)):
        steps[i]["issue"](RING0 + 20 * (i % depth))
        marks[i] = vm.n
    if after_initial:
        after_initial()
    a("v_lshlrev_b32 v8, 4, v1")
    if ldsbase is not None:
        a(f"v_add_u32 v8, s{ldsbase}, v8")
    for ap in (1, 2, 3):
        a(f"s_xor_b32 s41, s40, {ap}\n s_mul_i32 s41, s41, {3 * 6144}\n s_add_u32 s41, s41, {(ap - 1) * 6144}\n v_add_u32 v{4 + ap}, s41, v8")
    a(f"s_mul_i32 s41, s40, {3 * 6144}\n v_add_u32 v8, s41, v8")
    for i in range(n):
        base = RING0 + 20 * (i % depth)
        vm.wait(marks[i])
        bb = base + 12
        if steps[i].get("tr2"):
            st = stage0 + 8 * (i % 2)
            for q in range(4):
                a(f"v_perm_b32 v{st + q}, v{bb + 2 * q + 1}, v{bb + 2 * q}, s44")
                a(f"v_perm_b32 v{st + 4 + q}, v{bb + 2 * q + 1}, v{bb + 2 * q}, s45")
            bb = st
        for ta in range(3):
            for tb in range(2):
                acc = ACC0 + 16 * (2 * ta + tb)
                c = "0" if i == 0 else vr(acc, 16)
                a(f"v_mfma_f32_32x32x16_bf16 {vr(acc, 16)}, {vr(base + 4 * ta, 4)}, {vr(bb + 4 * tb, 4)}, {c}")
        if i + depth < n:
            steps[i + depth]["issue"](base)
            marks[i + depth] = vm.n
    for tt in range(6):
        for ap in (1, 2, 3):
            a(f"ds_write_b128 v{4 + ap}, {vr(ACC0 + 16 * tt + 4 * ap, 4)} offset:{tt * 1024}")
    a("s_waitcnt lgkmcnt(0)\n s_barrier")
    R = RING0
    for tt in range(6):
        for sl in range(3):
            a(f"ds_read_b128 {vr(R + 12 * tt + 4 * sl, 4)}, v8 offset:{sl * 6144 + tt * 1024}")
    for tt in range(6):
        a(f"s_waitcnt lgkmcnt({min(15, 3 * (5 - tt))})")
        acc = ACC0 + 16 * tt
        r = R + 12 * tt
        for q in (0, 2):
            a(f"v_pk_add_f32 {vr(r + q, 2)}, {vr(r + q, 2)}, {vr(r + 4 + q, 2)}")
            a(f"v_pk_add_f32 {vr(acc + q, 2)}, {vr(acc + q, 2)}, {vr(r + 8 + q, 2)}")
        for q in (0, 2):
            a(f"v_pk_add_f32 {vr(acc + q, 2)}, {vr(acc + q, 2)}, {vr(r + q, 2)}")


def ld_blk(a, vm, dst, nt, voff, srdn, soff_reg, soff_imm, tile_stride=512):
    if soff_reg is None:
        a(f"s_mov_b32 s42, {soff_imm}")
    else:
        a(f"s_add_u32 s42, s{soff_reg}, {soff_imm}")
    for t in range(nt):
        a(f"buffer_load_dwordx4 {vr(dst + 4 * t, 4)}, v{voff}, {sr(srdn, 4)}, s42 offen offset:{t * tile_stride}")
        vm.issue()
```

```python
from common import *
from k_qkv import red32

ATT_LDS = 163840
FLAG = 155648
MXA = 155648 + 1024

OA, OBB = 16, 32
SB = (48, 64)
P = 80
QM = (88, 92)
QE = (96, 98)
KM = (100, 104)
KE = (108, 110)
VF = (112, 120)
T = 128
ROUNDS = 19


def kreads(a, j, buf):
    o = (j // 4) * 2 * CH
    kt = j % 4
    a(f"ds_read_b128 {vr(KM[buf], 4)}, v6 offset:{o + kt * 512}")
    a(f"ds_read_b32 v{KE[buf]}, v7 offset:{o + CH_K2 + kt * 128}")


def vreads(a, j, buf):
    o = (j // 4) * 2 * CH
    kt = j % 4
    for m in range(2):
        a(f"ds_read_b128 {vr(VF[buf] + 4 * m, 4)}, v8 offset:{o + CH_V + (2 * (2 * kt + m)) * VP}")


def sext(a, sb, kbuf, tq):
    a(f"v_mfma_f32_32x32x8bf16_1k {vr(SB[sb], 16)}, {vr(KE[kbuf], 2)}, {vr(QE[tq], 2)}, 0")


def smain(a, sb, kbuf, tq):
    a(f"v_mfma_f32_32x32x16_bf16 {vr(SB[sb], 16)}, {vr(KM[kbuf], 4)}, {vr(QM[tq], 4)}, {vr(SB[sb], 16)}")


def pv(a, o, vbuf, m):
    a(f"v_mfma_f32_32x32x16_bf16 {vr(o, 16)}, {vr(VF[vbuf] + 4 * m, 4)}, {vr(P + 4 * m, 4)}, {vr(o, 16)}")


def exps(a, sb, lo, hi):
    for r in range(lo, hi):
        a(f"v_exp_f32 v{SB[sb] + r}, v{SB[sb] + r}")


def cvts(a, sb, lo, hi):
    for r in range(lo, hi):
        a(f"v_cvt_pk_bf16_f32 v{P + r}, v{SB[sb] + 2 * r}, v{SB[sb] + 2 * r + 1}")


def body(a, j):
    kb, nb = j & 1, (j + 1) & 1
    kreads(a, j + 1, nb)
    sext(a, 1, kb, 1)
    exps(a, 0, 0, 4)
    pv(a, OBB, nb, 1)
    exps(a, 0, 4, 8)
    cvts(a, 0, 0, 4)
    smain(a, 1, kb, 1)
    exps(a, 0, 8, 12)
    a("s_waitcnt lgkmcnt(2)")
    pv(a, OA, kb, 0)
    vreads(a, j + 1, nb)
    exps(a, 0, 12, 16)
    cvts(a, 0, 4, 8)
    a("s_waitcnt lgkmcnt(2)")
    sext(a, 0, nb, 0)
    exps(a, 1, 0, 4)
    pv(a, OA, kb, 1)
    exps(a, 1, 4, 8)
    cvts(a, 1, 0, 4)
    smain(a, 0, nb, 0)
    exps(a, 1, 8, 12)
    pv(a, OBB, kb, 0)
    exps(a, 1, 12, 16)
    cvts(a, 1, 4, 8)


def kernels():
    a = A()
    n = "attn"
    prologue(a, 256, n)
    a(f"""
    s_and_b32 s41, s2, 7
    s_lshl_b32 s46, s41, 2
    s_bfe_u32 s41, s2, 0x20003
    s_add_u32 s46, s46, s41
    s_lshr_b32 s47, s2, 5
    s_and_b32 s44, s40, 1
    s_lshr_b32 s45, s40, 1
    s_mov_b32 s48, 0
    v_lshlrev_b32 v5, 4, v1
    s_mul_i32 s49, s46, {KVS}
    s_lshl_b32 s50, s40, 10
    s_add_u32 s49, s49, s50
    s_lshl_b32 s41, s47, 8
    s_lshl_b32 s42, s45, 6
    s_add_u32 s41, s41, s42
    s_lshl_b32 s42, s44, 5
    v_add_u32 v9, s41, v2
    v_add_u32 v9, s42, v9
    v_xor_b32 v10, 32, v9
    v_lshlrev_b32 v4, 15, v3
    v_lshl_add_u32 v11, v9, 4, v4
    v_lshl_add_u32 v12, v10, 4, v4
    v_lshlrev_b32 v9, 2, v9
    v_lshlrev_b32 v10, 2, v10
    v_lshlrev_b32 v13, 3, v2
    s_lshl_b32 s51, s46, 16
    s_lshl_b32 s52, s46, 13
    s_lshl_b32 s53, s46, 8
    s_waitcnt lgkmcnt(0)
    """)
    srd(a, 24, 20, 32 * KVS, KV)
    srd(a, 28, 20, 32 * 65536, QI)
    srd(a, 32, 20, 32 * 8192, QX)
    srd(a, 36, 20, 32 * 256, KMX)
    a(f"""
    buffer_load_dwordx2 {vr(T, 2)}, v13, s[36:39], s53 offen
    buffer_load_dwordx4 {vr(QM[0], 4)}, v11, s[28:31], s51 offen
    buffer_load_dwordx4 {vr(QM[1], 4)}, v12, s[28:31], s51 offen
    buffer_load_dword v{QE[0]}, v9, s[32:35], s52 offen
    buffer_load_dword v{QE[1]}, v10, s[32:35], s52 offen
    {n}_dma:
    s_mov_b32 m0, s50
    s_mov_b32 s42, s49
    """)
    for r in range(ROUNDS):
        a("buffer_load_dwordx4 v5, s[24:27], s42 offen lds")
        if r + 1 < ROUNDS:
            a("s_add_u32 m0, m0, 8192\n s_add_u32 s42, s42, 8192")
    srd(a, 28, 20, 64 * 32768, OB)
    srd(a, 32, 20, 32 * 8192, OX)
    a(f"""
    s_mul_i32 s41, s44, {CH}
    v_lshlrev_b32 v13, 4, v2
    v_lshl_add_u32 v13, v3, 11, v13
    v_add_u32 v13, s41, v13
    v_lshlrev_b32 v14, 2, v2
    v_add_u32 v14, s41, v14
    v_bfe_u32 v4, v2, 2, 1
    v_lshlrev_b32 v4, 3, v4
    v_bfe_u32 v15, v2, 3, 1
    v_lshl_add_u32 v4, v15, 2, v4
    v_and_b32 v15, 3, v2
    v_add_u32 v4, v4, v15
    v_min_u32 v15, 18, v2
    v_cmp_gt_u32 vcc, 16, v2
    v_cndmask_b32 v4, v15, v4, vcc
    v_mul_u32_u24 v15, {VP}, v3
    v_lshl_add_u32 v15, v4, 4, v15
    v_add_u32 v15, s41, v15
    v_mov_b32 v{KE[0] + 1}, 0x3f803f80
    v_mov_b32 v{KE[1] + 1}, 0x3f803f80
    v_mov_b32 v4, {FLAG}
    v_mov_b32 v{T + 2}, 0
    ds_write_b32 v4, v{T + 2}
    v_cmp_eq_u32 vcc, 0, v3
    s_cmp_lg_u32 s48, 0
    s_cbranch_scc1 {n}_maxpass
    s_waitcnt vmcnt({ROUNDS})
    v_add_f32 v{T}, v{T}, v{T + 1}
    v_cndmask_b32 v{QE[0]}, 0, v{QE[0]}, vcc
    v_cndmask_b32 v{QE[1]}, 0, v{QE[1]}, vcc
    """)
    red32(a, T, T + 1)
    for tq in range(2):
        t = T + 2 + tq
        a(f"v_dot2_f32_bf16 v{t}, v{QE[tq]}, v{QE[tq]}, 0")
        for q in range(4):
            a(f"v_dot2_f32_bf16 v{t}, v{QM[tq] + q}, v{QM[tq] + q}, v{t}")
    a(f"""
    v_mov_b32 v{T + 4}, v{T + 2}
    v_mov_b32 v{T + 5}, v{T + 3}
    v_permlane32_swap_b32 v{T + 2}, v{T + 4}
    v_permlane32_swap_b32 v{T + 3}, v{T + 5}
    v_add_f32 v{T + 2}, v{T + 2}, v{T + 4}
    v_add_f32 v{T + 3}, v{T + 3}, v{T + 5}
    v_mul_f32 v{T + 2}, v{T + 2}, v{T}
    v_mul_f32 v{T + 3}, v{T + 3}, v{T}
    v_sqrt_f32 v{T + 2}, v{T + 2}
    v_sqrt_f32 v{T + 3}, v{T + 3}
    {n}_setm:
    """)
    for tq in range(2):
        m = T + 2 + tq
        a(f"""
        v_sub_f32 v{m}, 0, v{m}
        v_and_b32 v{T + 4}, 0xffff0000, v{m}
        v_sub_f32 v{m}, v{m}, v{T + 4}
        v_and_b32 v{T + 5}, 0xffff0000, v{m}
        v_sub_f32 v{m}, v{m}, v{T + 5}
        v_lshrrev_b32 v{T + 4}, 16, v{T + 4}
        v_or_b32 v{T + 4}, v{T + 4}, v{T + 5}
        v_and_b32 v{m}, 0xffff0000, v{m}
        v_cndmask_b32 v{QE[tq] + 1}, v{m}, v{T + 4}, vcc
        """)
    a(f"""
    v_mov_b32 v6, v13
    v_mov_b32 v7, v14
    v_mov_b32 v8, v15
    s_mov_b32 s54, 0
    """)
    for r in range(16):
        a(f"v_mov_b32 v{OA + r}, 0\n v_mov_b32 v{OBB + r}, 0")
    for r in range(4):
        a(f"v_mov_b32 v{P + 4 + r}, 0\n v_mov_b32 v{VF[1] + 4 + r}, 0")
    a(f"s_waitcnt vmcnt({ROUNDS - 3}) lgkmcnt(0)\n s_barrier")
    kreads(a, 0, 0)
    vreads(a, 0, 0)
    a("s_waitcnt lgkmcnt(2)")
    sext(a, 0, 0, 0)
    smain(a, 0, 0, 0)
    a(f"{n}_loop:")
    for j in range(3):
        body(a, j)
    a(f"""
    s_bitcmp1_b32 s54, 0
    s_cbranch_scc1 {n}_nobar
    s_cmp_gt_u32 s54, 2
    s_cbranch_scc1 {n}_nobar
    s_waitcnt vmcnt({ROUNDS - 7})
    s_cmp_eq_u32 s54, 0
    s_cbranch_scc1 {n}_bar
    s_waitcnt vmcnt(0)
    {n}_bar:
    s_barrier
    {n}_nobar:
    """)
    body(a, 3)
    a(f"""
    v_add_u32 v6, {2 * CH}, v6
    v_add_u32 v7, {2 * CH}, v7
    v_add_u32 v8, {2 * CH}, v8
    s_add_u32 s54, s54, 1
    s_cmp_lt_u32 s54, 8
    s_cbranch_scc1 {n}_loop
    """)
    pv(a, OBB, 1, 1)
    a(f"""
    s_mul_i32 s41, s40, 3072
    s_xor_b32 s42, s40, 1
    s_mul_i32 s42, s42, 3072
    v_add_u32 v6, s41, v5
    v_add_u32 v7, s42, v5
    v_mov_b32 v4, {FLAG}
    v_mov_b32 v{T}, {f32bits(2.0 ** -60):#x}
    v_cmp_nge_f32 s[56:57], v{OA + 10}, v{T}
    v_cmp_nge_f32 vcc, v{OBB + 10}, v{T}
    ds_write_b128 v6, {vr(OBB, 4)}
    ds_write_b128 v6, {vr(OBB + 4, 4)} offset:1024
    ds_write_b128 v6, {vr(OBB + 8, 4)} offset:2048
    s_or_b64 vcc, vcc, s[56:57]
    s_cbranch_vccz {n}_noflag
    ds_write_b32 v4, v4
    {n}_noflag:
    s_waitcnt lgkmcnt(0)
    s_barrier
    ds_read_b32 v{T}, v4
    ds_read_b128 {vr(SB[0] + 8, 4)}, v7 offset:2048
    ds_read_b128 {vr(SB[0], 4)}, v7
    ds_read_b128 {vr(SB[0] + 4, 4)}, v7 offset:1024
    s_waitcnt lgkmcnt(3)
    v_readfirstlane_b32 s41, v{T}
    s_cmp_eq_u32 s48, 0
    s_cselect_b32 s41, s41, 0
    s_cmp_lg_u32 s41, 0
    s_cbranch_scc1 {n}_fallback
    s_waitcnt lgkmcnt(2)
    v_add_f32 v{T}, v{OA + 10}, v{SB[0] + 10}
    v_rcp_f32 v{T}, v{T}
    v_pk_add_f32 {vr(OA + 8, 2)}, {vr(OA + 8, 2)}, {vr(SB[0] + 8, 2)}
    s_waitcnt lgkmcnt(0)
    """)
    for q in range(4):
        a(f"v_pk_add_f32 {vr(OA + 2 * q, 2)}, {vr(OA + 2 * q, 2)}, {vr(SB[0] + 2 * q, 2)}")
    for q in range(5):
        a(f"v_pk_mul_f32 {vr(OA + 2 * q, 2)}, {vr(OA + 2 * q, 2)}, {vr(T, 2)} op_sel_hi:[1,0]")
        a(f"v_cvt_pk_bf16_f32 v{P + q}, v{OA + 2 * q}, v{OA + 2 * q + 1}")
    a(f"""
    buffer_store_dwordx4 {vr(P, 4)}, v11, s[28:31], s51 offen
    s_mov_b32 exec_hi, 0
    buffer_store_dword v{P + 4}, v9, s[32:35], s52 offen
    {n}_exit:
    s_endpgm
    {n}_fallback:
    s_waitcnt lgkmcnt(0)
    s_mov_b32 s48, 1
    s_barrier
    s_branch {n}_dma
    {n}_maxpass:
    v_mov_b32 v6, v13
    v_mov_b32 v7, v14
    v_mov_b32 v{QE[0] + 1}, 0
    v_mov_b32 v{QE[1] + 1}, 0
    v_mov_b32 v{T + 2}, 0xff800000
    v_mov_b32 v{T + 3}, 0xff800000
    s_mov_b32 s54, 0
    s_waitcnt vmcnt(0) lgkmcnt(0)
    s_barrier
    {n}_mloop:
    """)
    for kt in range(4):
        kreads(a, kt, 0)
        a("s_waitcnt lgkmcnt(0)")
        for tq in range(2):
            sext(a, tq, 0, tq)
            smain(a, tq, 0, tq)
        for tq in range(2):
            for q in range(8):
                a(f"v_max3_f32 v{T + 2 + tq}, v{SB[tq] + 2 * q}, v{SB[tq] + 2 * q + 1}, v{T + 2 + tq}")
    a(f"""
    v_add_u32 v6, {2 * CH}, v6
    v_add_u32 v7, {2 * CH}, v7
    s_add_u32 s54, s54, 1
    s_cmp_lt_u32 s54, 8
    s_cbranch_scc1 {n}_mloop
    v_mov_b32 v{T + 4}, v{T + 2}
    v_mov_b32 v{T + 5}, v{T + 3}
    v_permlane32_swap_b32 v{T + 2}, v{T + 4}
    v_permlane32_swap_b32 v{T + 3}, v{T + 5}
    v_max_f32 v{T + 2}, v{T + 2}, v{T + 4}
    v_max_f32 v{T + 3}, v{T + 3}, v{T + 5}
    s_lshl_b32 s41, s40, 9
    s_add_u32 s41, s41, {MXA}
    v_lshlrev_b32 v4, 3, v1
    v_add_u32 v6, s41, v4
    s_xor_b32 s41, s41, 512
    v_add_u32 v7, s41, v4
    ds_write_b64 v6, {vr(T + 2, 2)}
    s_waitcnt lgkmcnt(0)
    s_barrier
    ds_read_b64 {vr(T + 4, 2)}, v7
    s_waitcnt lgkmcnt(0)
    v_max_f32 v{T + 2}, v{T + 2}, v{T + 5}
    v_max_f32 v{T + 3}, v{T + 3}, v{T + 4}
    v_cmp_eq_u32 vcc, 0, v3
    s_branch {n}_setm
    """)
    return [("attn_kernel", a.text(), 136)]


def launch():
    return ("attn_kernel", 256, 512, ATT_LDS)
```

```python
from common import *
import k_gemm
from k_gemm import TABB, t1_a_addr, blk_epilogue

ZB = 0
LB = 16384
LSZ = 32 * 272
FFT_LDS = LB + 2 * LSZ

UO, SS, FW, FR, FI = 16, 24, 48, 56, 64
M1R, M1I, M2, TWC, TWS = 72, 88, 104, 136, 144
ZF, AC, DB, T = 152, 184, 200, 208


def m2(v, t, ri):
    return M2 + 16 * v + 8 * t + 4 * ri


def cmul(a, re, im, c, s_, out, conj_out=False, wconj=True):
    for q in (0, 2):
        tr, ti = T + q, T + 4 + q
        if wconj:
            a(f"v_pk_mul_f32 {vr(tr, 2)}, {vr(re + q, 2)}, {vr(c + q, 2)}")
            a(f"v_pk_mul_f32 {vr(ti, 2)}, {vr(im + q, 2)}, {vr(c + q, 2)}")
            a(f"v_pk_fma_f32 {vr(tr, 2)}, {vr(im + q, 2)}, {vr(s_ + q, 2)}, {vr(tr, 2)}")
            a(f"v_pk_fma_f32 {vr(ti, 2)}, {vr(re + q, 2)}, {vr(s_ + q, 2)}, {vr(ti, 2)} neg_lo:[1,0,0] neg_hi:[1,0,0]")
        else:
            assert conj_out
            a(f"v_pk_mul_f32 {vr(tr, 2)}, {vr(re + q, 2)}, {vr(c + q, 2)}")
            a(f"v_pk_mul_f32 {vr(ti, 2)}, {vr(im + q, 2)}, {vr(c + q, 2)} neg_lo:[1,0] neg_hi:[1,0]")
            a(f"v_pk_fma_f32 {vr(tr, 2)}, {vr(im + q, 2)}, {vr(s_ + q, 2)}, {vr(tr, 2)} neg_lo:[1,0,0] neg_hi:[1,0,0]")
            a(f"v_pk_fma_f32 {vr(ti, 2)}, {vr(re + q, 2)}, {vr(s_ + q, 2)}, {vr(ti, 2)} neg_lo:[1,0,0] neg_hi:[1,0,0]")
    for r in range(4):
        a(f"v_cvt_pk_bf16_f32 v{out + r}, v{T + r}, v{T + 4 + r}")


def role_fft(a):
    a(f"""
    s_lshr_b32 s46, s40, 2
    s_and_b32 s47, s40, 3
    s_lshl_b32 s41, s47, 1
    s_add_u32 s48, s41, s46
    s_lshl_b32 s41, s2, 14
    s_lshl_b32 s42, s48, 11
    s_add_u32 s49, s41, s42
    v_lshlrev_b32 v5, 5, v1
    v_lshlrev_b32 v6, 4, v1
    s_lshl_b32 s50, s48, 10
    s_lshl_b32 s42, s46, 13
    s_add_u32 s41, s41, s42
    s_lshl_b32 s42, s47, 10
    s_add_u32 s51, s41, s42
    s_add_u32 s52, s51, 4096
    s_waitcnt lgkmcnt(0)
    """)
    srd(a, 24, 20, 144 * 16384, UB)
    srd(a, 28, 20, 6 * 8192, SSP)
    srd(a, 32, 20, 288 * 8192, WT)
    a(f"""
    buffer_load_dwordx4 {vr(UO, 4)}, v5, s[24:27], s49 offen
    buffer_load_dwordx4 {vr(UO + 4, 4)}, v5, s[24:27], s49 offen offset:16
    """)
    for j in range(6):
        a(f"buffer_load_dwordx4 {vr(SS + 4 * j, 4)}, v6, s[28:31], s50 offen")
        if j < 5:
            a("s_add_u32 s50, s50, 8192")
    a(f"""
    buffer_load_dwordx4 {vr(FW, 4)}, v6, s[32:35], s51 offen
    buffer_load_dwordx4 {vr(FW + 4, 4)}, v6, s[32:35], s52 offen
    """)
    a(f"""
    v_lshrrev_b32 v7, 4, v1
    v_lshlrev_b32 v7, 2, v7
    v_and_b32 v8, 15, v1
    s_lshl_b32 s41, s47, 4
    v_add_u32 v9, s41, v8
    v_cvt_f32_u32 v7, v7
    v_cvt_f32_u32 v10, v9
    v_cvt_f32_u32 v11, v8
    v_mul_f32 v10, {f32bits(1 / 64):#x}, v10
    v_mul_f32 v11, {f32bits(1 / 32):#x}, v11
    v_mul_f32 v12, v7, v10
    v_mul_f32 v13, v7, v11
    """)
    for (ang0, step, R, I) in ((12, 10, M1R, M1I), (13, 11, m2(0, 0, 0), m2(0, 0, 1))):
        for r in range(4):
            if r == 0:
                src = ang0
            else:
                a(f"v_fmamk_f32 v{T}, v{step}, {f32bits(float(r)):#x}, v{ang0}")
                src = T
            a(f"""
            v_cos_f32 v{T + 1}, v{src}
            v_sin_f32 v{T + 2}, v{src}
            v_cvt_pk_bf16_f32 v{R + r}, v{T + 1}, v{T + 2}
            v_cvt_pk_bf16_f32 v{I + r}, -v{T + 2}, v{T + 1}
            """)
    a(f"""
    s_mov_b32 s44, 0x80008000
    v_and_b32 v4, 1, v9
    v_cmp_eq_u32 vcc, 1, v4
    v_mul_lo_u32 v14, v4, s44
    v_bfe_u32 v4, v9, 1, 1
    v_mul_lo_u32 v15, v4, s44
    v_xor_b32 v4, v14, v15
    """)
    for r in range(4):
        a(f"""
        v_cndmask_b32 v{T}, v{M1R + r}, v{M1I + r}, vcc
        v_cndmask_b32 v{T + 1}, v{M1I + r}, v{M1R + r}, vcc
        v_xor_b32 v{M1R + 4 + r}, v15, v{T}
        v_xor_b32 v{M1I + 4 + r}, v4, v{T + 1}
        v_xor_b32 v{M1R + 8 + r}, v14, v{M1R + r}
        v_xor_b32 v{M1I + 8 + r}, v14, v{M1I + r}
        v_xor_b32 v{M1R + 12 + r}, v14, v{M1R + 4 + r}
        v_xor_b32 v{M1I + 12 + r}, v14, v{M1I + 4 + r}
        """)
    for ri in range(2):
        for r in range(4):
            b = m2(0, 0, ri) + r
            a(f"v_xor_b32 v{m2(0, 1, ri) + r}, v14, v{b}")
            if r & 1:
                a(f"v_xor_b32 v{m2(1, 0, ri) + r}, s44, v{b}")
                a(f"v_xor_b32 v{m2(1, 1, ri) + r}, s44, v{m2(0, 1, ri) + r}")
            else:
                a(f"v_mov_b32 v{m2(1, 0, ri) + r}, v{b}")
                a(f"v_mov_b32 v{m2(1, 1, ri) + r}, v{m2(0, 1, ri) + r}")
    a(f"v_mul_f32 v10, {f32bits(1 / 32):#x}, v10\n v_mul_f32 v12, {f32bits(1 / 32):#x}, v12")
    for t in range(2):
        for r in range(4):
            a(f"""
            v_fmamk_f32 v{T}, v10, {f32bits(float(16 * t + r)):#x}, v12
            v_cos_f32 v{TWC + 4 * t + r}, v{T}
            v_sin_f32 v{TWS + 4 * t + r}, v{T}
            """)
    a(f"""
    s_lshl_b32 s41, s48, 10
    v_add_u32 v10, s41, v6
    s_lshl_b32 s41, s46, 13
    v_add_u32 v11, s41, v6
    v_lshrrev_b32 v12, 4, v1
    v_mul_u32_u24 v13, {4 * 272}, v12
    v_lshl_add_u32 v13, v9, 2, v13
    s_mul_i32 s41, s46, {LSZ}
    s_add_u32 s41, s41, {LB}
    v_add_u32 v13, s41, v13
    v_mul_u32_u24 v7, 272, v8
    v_lshl_add_u32 v7, v12, 4, v7
    s_mul_i32 s41, s46, {16 * 272}
    s_add_u32 s41, s41, {LB}
    v_add_u32 v7, s41, v7
    s_cmp_eq_u32 s2, 0
    s_cselect_b32 s45, 0xffff, -1
    s_cselect_b32 s54, 0, {f32bits(-1 / 2048):#x}
    s_mov_b32 s55, s54
    s_mov_b32 s56, {f32bits(-1 / 2048):#x}
    s_mov_b32 s57, s56
    s_mov_b32 s58, {f32bits(1 / 2048):#x}
    s_mov_b32 s59, s58
    v_mov_b32 v4, {f32bits(EPS):#x}
    s_waitcnt vmcnt(2)
    """)
    for q in (0, 2):
        a(f"""
        v_pk_add_f32 {vr(SS + q, 2)}, {vr(SS + q, 2)}, {vr(SS + 4 + q, 2)}
        v_pk_add_f32 {vr(SS + 8 + q, 2)}, {vr(SS + 8 + q, 2)}, {vr(SS + 12 + q, 2)}
        v_pk_add_f32 {vr(SS + 16 + q, 2)}, {vr(SS + 16 + q, 2)}, {vr(SS + 20 + q, 2)}
        v_pk_add_f32 {vr(SS + q, 2)}, {vr(SS + q, 2)}, {vr(SS + 8 + q, 2)}
        v_pk_add_f32 {vr(SS + q, 2)}, {vr(SS + q, 2)}, {vr(SS + 16 + q, 2)}
        """)
    for r in range(4):
        a(f"v_fmamk_f32 v{SS + r}, v{SS + r}, {f32bits(1 / 576):#x}, v4")
        a(f"v_rsq_f32 v{SS + r}, v{SS + r}")
    OU = SS + 4
    for r in range(4):
        for col in range(2):
            a(f"v_lshlrev_b32 v{OU + 8 * col + r}, 16, v{UO + 2 * r + col}")
            a(f"v_and_b32 v{OU + 8 * col + 4 + r}, 0xffff0000, v{UO + 2 * r + col}")
    for col in range(2):
        for q in (0, 2):
            a(f"v_pk_mul_f32 {vr(T + q, 2)}, {vr(OU + 8 * col + q, 2)}, {vr(SS + q, 2)}")
            a(f"v_pk_mul_f32 {vr(T + 4 + q, 2)}, {vr(OU + 8 * col + 4 + q, 2)}, {vr(SS + q, 2)}")
        for r in range(4):
            a(f"v_cvt_pk_bf16_f32 v{DB + 4 * col + r}, v{T + r}, v{T + 4 + r}")
            if col == 0:
                a(f"v_and_b32 v{DB + r}, s45, v{DB + r}")
        a(f"ds_write_b128 v10, {vr(DB + 4 * col, 4)} offset:{ZB + 8192 * col}")
    a("s_waitcnt lgkmcnt(0)\n s_barrier")
    for w in range(4):
        for t in range(2):
            a(f"ds_read_b128 {vr(ZF + 4 * (2 * w + t), 4)}, v11 offset:{ZB + (2 * w + t) * 1024}")
    a("s_waitcnt vmcnt(0)")
    for i in range(8):
        a(f"v_lshlrev_b32 v{FR + i}, 16, v{FW + i}\n v_and_b32 v{FI + i}, 0xffff0000, v{FW + i}")
    ac = lambda x, ri: AC + 8 * x + 4 * ri
    for w in range(4):
        a(f"s_waitcnt lgkmcnt({6 - 2 * w})")
        for t in range(2):
            for ri, M in ((0, M1R), (1, M1I)):
                c = "0" if w == 0 else vr(ac(t, ri), 4)
                a(f"v_mfma_f32_16x16x32_bf16 {vr(ac(t, ri), 4)}, {vr(ZF + 4 * (2 * w + t), 4)}, {vr(M + 4 * w, 4)}, {c}")
    for t in range(2):
        cmul(a, ac(t, 0), ac(t, 1), TWC + 4 * t, TWS + 4 * t, DB + 4 * t)

    def st23():
        for k in range(2):
            for x in range(2):
                for ri in range(2):
                    c = "0" if k == 0 else vr(ac(x, ri), 4)
                    a(f"v_mfma_f32_16x16x32_bf16 {vr(ac(x, ri), 4)}, {vr(m2(x, k, ri), 4)}, {vr(DB + 4 * k, 4)}, {c}")
    st23()
    for v in range(2):
        cmul(a, ac(v, 0), ac(v, 1), FR + 4 * v, FI + 4 * v, DB + 4 * v, conj_out=True, wconj=False)
    st23()
    for t in range(2):
        cmul(a, ac(t, 0), ac(t, 1), TWC + 4 * t, TWS + 4 * t, DB + 4 * t)
        for r in range(4):
            a(f"ds_write_b32 v13, v{DB + 4 * t + r} offset:{(16 * t + r) * 272}")
    a("s_waitcnt lgkmcnt(0)\n s_barrier")
    for st in range(4):
        for col in range(2):
            a(f"ds_read_b128 {vr(ZF + 4 * (2 * st + col), 4)}, v7 offset:{col * LSZ + st * 64}")
    for st in range(4):
        a(f"s_waitcnt lgkmcnt({6 - 2 * st})")
        for col in range(2):
            for ri, M in ((0, M1R), (1, M1I)):
                c = "0" if st == 0 else vr(ac(col, ri), 4)
                a(f"v_mfma_f32_16x16x32_bf16 {vr(ac(col, ri), 4)}, {vr(M + 4 * st, 4)}, {vr(ZF + 4 * (2 * st + col), 4)}, {c}")
    for col in range(2):
        sim = 54 if col == 0 else 56
        for q in (0, 2):
            a(f"v_pk_fma_f32 {vr(OU + 8 * col + q, 2)}, {vr(ac(col, 0) + q, 2)}, s[58:59], {vr(OU + 8 * col + q, 2)}")
            a(f"v_pk_fma_f32 {vr(OU + 8 * col + 4 + q, 2)}, {vr(ac(col, 1) + q, 2)}, {sr(sim, 2)}, {vr(OU + 8 * col + 4 + q, 2)}")
        for r in range(4):
            a(f"v_cvt_pk_bf16_f32 v{UO + 2 * r + col}, v{OU + 8 * col + r}, v{OU + 8 * col + 4 + r}")
    a(f"""
    buffer_store_dwordx4 {vr(UO, 4)}, v5, s[24:27], s49 offen
    buffer_store_dwordx4 {vr(UO + 4, 4)}, v5, s[24:27], s49 offen offset:16
    s_endpgm
    """)


def role_wp(a, wg0):
    vm = VM(a)
    a(f"""
    s_sub_u32 s46, s2, {wg0}
    s_lshl_b32 s46, s46, 1
    s_lshr_b32 s41, s40, 2
    s_add_u32 s46, s46, s41
    s_mul_i32 s53, s41, {RED_BYTES}
    s_and_b32 s40, s40, 3
    s_lshr_b32 s47, s46, 5
    s_and_b32 s46, s46, 31
    """)
    srd_tab(a, 36, "CM", 8192)
    a(f"""
    s_lshl_b32 s41, s46, 8
    v_lshlrev_b32 v4, 3, v2
    buffer_load_dwordx2 v[14:15], v4, s[36:39], s41 offen
    """)
    srd_tab(a, 24, "T1", TABB)
    a("s_mul_i32 s48, s47, 96")
    t1_a_addr(a, 9, 48)
    a(f"""
    s_mul_i32 s43, s40, {9 * 18432}
    s_mul_i32 s49, s40, {144 * 3456}
    s_mov_b32 s44, 0x05040100
    s_mov_b32 s45, 0x07060302
    v_mul_u32_u24 v4, {8 * 3456}, v3
    s_waitcnt lgkmcnt(0)
    """)
    srd(a, 28, 12, N * 1728 * 2)
    srd(a, 32, 20, 72 * 2048 * 16, WP)
    a(f"""
    s_waitcnt vmcnt(0)
    v_add_u32 v10, v14, v4
    v_mov_b32 v14, v15
    """)

    def mk(i):
        def issue(base):
            for q in range(8):
                if q % 2 == 0:
                    a(f"s_add_u32 s42, s49, {(16 * i + q) * 3456}")
                a(f"buffer_load_dword v{base + 12 + q}, v10, s[28:31], s42 offen offset:{3456 * (q & 1)}")
                vm.issue()
            ld_blk(a, vm, base, 3, 9, 24, 43, i * 18432)
        return dict(issue=issue, tr2=True)

    def addr():
        a(f"""
        s_mul_i32 s41, s47, 12
        s_add_u32 s41, s41, s40
        s_lshl_b32 s41, s41, 11
        s_lshl_b32 s42, s46, 6
        s_add_u32 s41, s41, s42
        v_lshl_add_u32 v13, v2, 1, v3
        v_add_u32 v13, s41, v13
        v_lshlrev_b32 v13, 4, v13
        s_or_b32 s41, s47, s40
        v_or_b32 v4, s41, v3
        v_cmp_eq_u32 vcc, 0, v4
        v_mov_b32 v12, -1
        v_mov_b32 v4, 0xffff
        v_cndmask_b32 v12, v12, v4, vcc
        """)
    gemm(a, vm, [mk(i) for i in range(9)], 5, stage0=RING0 + 120, after_initial=addr, ldsbase=53)
    blk_epilogue(a, 13, 32, 4 * 2048 * 16, scale=14, dcmask=12)


def kernels():
    a = A()
    a("s_mov_b32 s3, 240\n fft_body:")
    prologue(a, "s3", "fft")
    a("s_cmp_ge_u32 s2, 144\n s_cbranch_scc1 fft_r1")
    role_fft(a)
    a("fft_r1:")
    role_wp(a, 144)
    a("fft_exit:\n s_endpgm")
    b = A()
    b("s_mov_b32 s3, 144\n s_branch fft_body")
    return [("p1_kernel", a.text(), 256), ("p5_kernel", b.text(), 256)]


def launch(i):
    if i == 1:
        return ("p1_kernel", 240, 512, 2 * RED_BYTES)
    return ("p5_kernel", 144, 512, FFT_LDS)
```

```python
from common import *

TABB = 72 * 576 * 16
GEMM_LDS = RED_BYTES + 1024


def tile_ids(a, wgreg="s2"):
    a(f"""
    s_and_b32 s46, {wgreg}, 7
    s_lshl_b32 s46, s46, 2
    s_bfe_u32 s41, {wgreg}, 0x20003
    s_add_u32 s46, s46, s41
    s_lshr_b32 s47, {wgreg}, 5
    """)


def xor_row(a, dst):
    a(f"s_lshl_b32 s41, s40, 3\n v_xor_b32 v{dst}, s41, v2")


def s_of_p_rows(a, dst, tmp):
    a(f"""
    s_lshr_b32 s41, s46, 3
    s_lshl_b32 s41, s41, 9
    s_and_b32 s42, s46, 3
    s_lshl_b32 s42, s42, 7
    s_add_u32 s41, s41, s42
    s_bfe_u32 s42, s46, 0x10002
    s_lshl_b32 s42, s42, 4
    s_add_u32 s41, s41, s42
    v_and_b32 v{tmp}, 3, v2
    v_lshlrev_b32 v{tmp}, 5, v{tmp}
    v_lshrrev_b32 v{dst}, 2, v2
    v_add3_u32 v{dst}, v{dst}, v{tmp}, s41
    """)


def u_addr(a, dst):
    a(f"""
    s_mul_i32 s41, s47, {24 * 16384}
    s_lshl_b32 s42, s40, 15
    s_add_u32 s41, s41, s42
    s_lshl_b32 s42, s46, 9
    s_add_u32 s41, s41, s42
    v_lshlrev_b32 v{dst}, 14, v3
    v_lshl_add_u32 v{dst}, v2, 3, v{dst}
    v_add_u32 v{dst}, s41, v{dst}
    """)


def u_epilogue(a, name, vaddr, srdU, srdS, old=None):
    P = RING0 + 80
    T = RING0 + 92
    a(f"""
    s_or_b32 s41, s47, s40
    v_or_b32 v4, s41, v3
    v_cmp_eq_u32 vcc, 0, v4
    v_mov_b32 v4, -1
    v_mov_b32 v{T}, 0xffff
    v_cndmask_b32 v4, v4, v{T}, vcc
    v_mov_b32 v{T + 2}, 0
    v_mov_b32 v{T + 3}, 0
    """)
    for tt in range(6):
        ta, tb = tt >> 1, tt & 1
        acc = ACC0 + 16 * tt
        if old is not None:
            o = old + 2 * tt
            a(f"""
            v_lshlrev_b32 v{T + 4}, 16, v{o}
            v_and_b32 v{T + 5}, 0xffff0000, v{o}
            v_lshlrev_b32 v{T + 6}, 16, v{o + 1}
            v_and_b32 v{T + 7}, 0xffff0000, v{o + 1}
            v_pk_add_f32 {vr(acc, 2)}, {vr(acc, 2)}, {vr(T + 4, 2)}
            v_pk_add_f32 {vr(acc + 2, 2)}, {vr(acc + 2, 2)}, {vr(T + 6, 2)}
            """)
        p = P + 2 * tt
        a(f"""
        v_cvt_pk_bf16_f32 v{p}, v{acc}, v{acc + 1}
        v_cvt_pk_bf16_f32 v{p + 1}, v{acc + 2}, v{acc + 3}
        s_mov_b32 s42, {ta * 131072}
        buffer_store_dwordx2 {vr(p, 2)}, v{vaddr}, {sr(srdU, 4)}, s42 offen offset:{tb * 256}
        """)
        if ta == 0:
            a(f"v_and_b32 v{T + 1}, v4, v{p}\n v_dot2_f32_bf16 v{T + 2 + tb}, v{T + 1}, v{T + 1}, v{T + 2 + tb}")
        else:
            a(f"v_dot2_f32_bf16 v{T + 2 + tb}, v{p}, v{p}, v{T + 2 + tb}")
        a(f"v_dot2_f32_bf16 v{T + 2 + tb}, v{p + 1}, v{p + 1}, v{T + 2 + tb}")
    a(f"""
    v_permlane32_swap_b32 v{T + 2}, v{T + 3}
    v_lshlrev_b32 v4, 2, v0
    v_add_u32 v5, {RED_BYTES}, v4
    v_add_f32 v{T + 2}, v{T + 2}, v{T + 3}
    ds_write_b32 v5, v{T + 2}
    s_waitcnt lgkmcnt(0)
    s_barrier
    s_cmp_lg_u32 s40, 0
    s_cbranch_scc1 {name}_done
    ds_read_b32 v{T + 4}, v5 offset:256
    ds_read_b32 v{T + 5}, v5 offset:512
    ds_read_b32 v{T + 6}, v5 offset:768
    s_lshl_b32 s41, s47, 13
    s_lshl_b32 s42, s46, 8
    s_add_u32 s41, s41, s42
    s_waitcnt lgkmcnt(0)
    v_add_f32 v{T + 2}, v{T + 2}, v{T + 4}
    v_add_f32 v{T + 5}, v{T + 5}, v{T + 6}
    v_add_f32 v{T + 2}, v{T + 2}, v{T + 5}
    buffer_store_dword v{T + 2}, v4, {sr(srdS, 4)}, s41 offen
    {name}_done:
    s_endpgm
    """)


def blk_epilogue(a, vaddr, srdO, ta_stride, scale=None, dcmask=None):
    P = RING0 + 80
    for ta in range(3):
        p = P + 4 * ta
        for tb in range(2):
            acc = ACC0 + 16 * (2 * ta + tb)
            if scale is not None:
                a(f"v_pk_mul_f32 {vr(acc, 2)}, {vr(acc, 2)}, {vr(scale, 2)}\n v_pk_mul_f32 {vr(acc + 2, 2)}, {vr(acc + 2, 2)}, {vr(scale, 2)}")
            a(f"v_cvt_pk_bf16_f32 v{p + 2 * tb}, v{acc}, v{acc + 1}\n v_cvt_pk_bf16_f32 v{p + 2 * tb + 1}, v{acc + 2}, v{acc + 3}")
            if dcmask is not None and ta == 0:
                a(f"v_and_b32 v{p + 2 * tb}, v{dcmask}, v{p + 2 * tb}")
        a(f"""
        v_permlane32_swap_b32 v{p}, v{p + 2}
        v_permlane32_swap_b32 v{p + 1}, v{p + 3}
        s_mov_b32 s42, {ta * ta_stride}
        buffer_store_dwordx4 {vr(p, 4)}, v{vaddr}, {sr(srdO, 4)}, s42 offen
        """)
    a("s_endpgm")


def t1_a_addr(a, dst, rowbase_sreg):
    xor_row(a, dst)
    a(f"""
    v_mul_u32_u24 v4, 576, v3
    v_add3_u32 v{dst}, v{dst}, v4, s{rowbase_sreg}
    v_lshlrev_b32 v{dst}, 4, v{dst}
    """)


def role_u0(a, name):
    vm = VM(a)
    tile_ids(a)
    srd_tab(a, 24, "T1", TABB)
    a("s_mul_i32 s48, s47, 96")
    t1_a_addr(a, 9, 48)
    s_of_p_rows(a, 10, 4)
    a(f"""
    s_mul_i32 s41, s40, 288
    v_mul_u32_u24 v10, 1152, v10
    v_lshl_add_u32 v10, v3, 4, v10
    v_add_u32 v10, s41, v10
    v_add_u32 v11, 9216, v10
    s_mul_i32 s43, s40, {9 * 18432}
    s_waitcnt lgkmcnt(0)
    """)
    srd(a, 28, 4, S * N * 2)
    srd(a, 32, 20, 144 * 16384, UB)
    srd(a, 36, 20, 6 * 8192, SSP)

    def mk(i):
        def issue(base):
            for tb in range(2):
                a(f"buffer_load_dwordx4 {vr(base + 12 + 4 * tb, 4)}, v{10 + tb}, s[28:31], 0 offen offset:{32 * i}")
                vm.issue()
            ld_blk(a, vm, base, 3, 9, 24, 43, i * 18432)
        return dict(issue=issue)
    gemm(a, vm, [mk(i) for i in range(9)], 7, after_initial=lambda: u_addr(a, 12))
    u_epilogue(a, name, 12, 32, 36)


def c2row(a, dst, tmp, tmp2):
    a(f"""
    v_lshrrev_b32 v{tmp}, 4, v{dst}
    v_lshl_add_u32 v{tmp}, v{tmp}, 1, v{dst}
    v_subrev_u32 v{tmp2}, 512, v{dst}
    v_cmp_gt_u32 vcc, 512, v{dst}
    v_and_b32 v{dst}, 1, v{tmp2}
    v_lshrrev_b32 v{tmp2}, 1, v{tmp2}
    v_mul_u32_u24 v{tmp2}, 18, v{tmp2}
    v_add3_u32 v{dst}, v{dst}, v{tmp2}, 16
    v_cndmask_b32 v{dst}, v{dst}, v{tmp}, vcc
    """)


def role_wop(a, name, wg0):
    vm = VM(a)
    a(f"""
    s_sub_u32 s46, s2, {wg0}
    s_mul_i32 s47, s46, 57
    s_lshr_b32 s47, s47, 9
    s_mul_i32 s41, s47, 9
    s_sub_u32 s46, s46, s41
    """)
    srd_tab(a, 24, "T1", TABB)
    xor_row(a, 12)
    a("s_mul_i32 s48, s47, 96\n s_mul_i32 s49, s40, 288")
    for ta in range(3):
        a(f"s_add_u32 s41, s48, {32 * ta}\n v_add_u32 v{9 + ta}, s41, v12")
        c2row(a, 9 + ta, 4, 13)
        a(f"""
        v_mul_u32_u24 v{9 + ta}, 1152, v{9 + ta}
        v_lshl_add_u32 v{9 + ta}, v3, 4, v{9 + ta}
        v_add_u32 v{9 + ta}, s49, v{9 + ta}
        """)
    a(f"""
    s_lshl_b32 s41, s46, 6
    v_mul_u32_u24 v4, 576, v3
    v_add3_u32 v12, v2, v4, s41
    v_lshlrev_b32 v12, 4, v12
    s_mul_i32 s43, s40, {9 * 18432}
    s_waitcnt lgkmcnt(0)
    """)
    srd(a, 28, 14, N * N * 2)
    srd(a, 32, 20, TABB, WOP)

    def mk(i):
        def issue(base):
            for ta in range(3):
                a(f"buffer_load_dwordx4 {vr(base + 4 * ta, 4)}, v{9 + ta}, s[28:31], 0 offen offset:{32 * i}")
                vm.issue()
            ld_blk(a, vm, base + 12, 2, 12, 24, 43, i * 18432)
        return dict(issue=issue)

    def addr():
        a(f"""
        s_mul_i32 s41, s47, 12
        s_add_u32 s41, s41, s40
        s_mul_i32 s41, s41, 576
        s_lshl_b32 s42, s46, 6
        s_add_u32 s41, s41, s42
        v_add_u32 v13, s41, v1
        v_lshlrev_b32 v13, 4, v13
        """)
    gemm(a, vm, [mk(i) for i in range(9)], 7, after_initial=addr)
    blk_epilogue(a, 13, 32, 4 * 576 * 16)


def role_filter(a, name, wg0):
    a(f"""
    s_sub_u32 s46, s2, {wg0}
    s_lshl_b32 s46, s46, 2
    s_add_u32 s46, s46, s40
    s_mul_i32 s47, s46, 57
    s_lshr_b32 s47, s47, 9
    s_mul_i32 s41, s47, 9
    s_sub_u32 s46, s46, s41
    """)
    a(f"""
    s_lshl_b32 s41, s46, 5
    v_add_u32 v5, s41, v2
    v_mov_b32 v6, 288
    v_cmp_eq_u32 vcc, 0, v5
    v_cndmask_b32 v6, v5, v6, vcc
    s_lshr_b32 s41, s47, 4
    s_lshl_b32 s41, s41, 10
    s_and_b32 s42, s47, 3
    s_lshl_b32 s42, s42, 8
    s_add_u32 s41, s41, s42
    s_bfe_u32 s42, s47, 0x20002
    s_lshl_b32 s42, s42, 4
    s_add_u32 s41, s41, s42
    s_mul_i32 s41, s41, 578
    v_mul_u32_u24 v7, {8 * 578}, v3
    v_lshl_add_u32 v6, v6, 1, v7
    v_add_u32 v6, s41, v6
    s_lshl_b32 s41, s47, 8
    v_lshlrev_b32 v5, 13, v5
    v_lshl_add_u32 v5, v3, 7, v5
    v_add_u32 v5, s41, v5
    s_waitcnt lgkmcnt(0)
    """)
    srd(a, 24, 6, S * 289 * 2)
    srd(a, 28, 8, S * 289 * 2)
    srd(a, 32, 20, 288 * 8192, WT)
    for r in range(4):
        a(f"s_mov_b32 s{44 + r}, {r * 64 * 578}")
    def fin(cc):
        for r in range(4):
            a(f"v_lshl_or_b32 v{16 + 4 * cc + r}, v{48 + 4 * cc + r}, 16, v{16 + 4 * cc + r}")
        a(f"buffer_store_dwordx4 {vr(16 + 4 * cc, 4)}, v5, s[32:35], 0 offen offset:{cc * 16}")
    for c in range(8):
        for r in range(4):
            a(f"buffer_load_ushort v{16 + 4 * c + r}, v6, s[24:27], s{44 + r} offen offset:{c * 578}")
            a(f"buffer_load_ushort v{48 + 4 * c + r}, v6, s[28:31], s{44 + r} offen offset:{c * 578}")
        if c >= 4:
            cc = c - 4
            a(f"s_waitcnt vmcnt({32 + cc})")
            fin(cc)
    for cc in range(4, 8):
        a(f"s_waitcnt vmcnt({8 * (7 - cc) + 4})")
        fin(cc)
    a("s_endpgm")


def role_wot(a, name, wg0):
    a(f"""
    s_sub_u32 s46, s2, {wg0}
    s_lshl_b32 s46, s46, 3
    s_lshl_b32 s41, s40, 1
    s_add_u32 s46, s46, s41
    v_add_u32 v5, s46, v3
    v_mul_u32_u24 v6, 7282, v5
    v_lshrrev_b32 v6, 16, v6
    v_mul_u32_u24 v7, 9, v6
    v_sub_u32 v5, v5, v7
    v_lshl_add_u32 v5, v5, 5, v2
    v_lshlrev_b32 v7, 3, v6
    """)
    c2row(a, 7, 8, 9)
    a(f"""
    v_mov_b32 v8, {18 * 1152}
    v_mov_b32 v9, 2304
    v_cndmask_b32 v8, v8, v9, vcc
    v_mul_u32_u24 v7, 1152, v7
    v_lshl_add_u32 v10, v5, 2, v7
    v_add_u32 v11, v10, v8
    v_add_u32 v12, v11, v8
    v_add_u32 v13, v12, v8
    v_mul_u32_u24 v6, {576 * 16}, v6
    v_lshl_add_u32 v5, v5, 5, v6
    s_mov_b32 s44, 0x05040100
    s_mov_b32 s45, 0x07060302
    s_waitcnt lgkmcnt(0)
    """)
    srd(a, 24, 14, N * N * 2)
    srd(a, 32, 20, TABB, WOT)
    for i in range(8):
        a(f"buffer_load_dword v{16 + i}, v{10 + (i >> 1)}, s[24:27], 0 offen offset:{1152 * (i & 1)}")
    a("s_waitcnt vmcnt(0)")
    for q in range(4):
        a(f"v_perm_b32 v{24 + q}, v{16 + 2 * q + 1}, v{16 + 2 * q}, s44")
        a(f"v_perm_b32 v{28 + q}, v{16 + 2 * q + 1}, v{16 + 2 * q}, s45")
    a("""
    buffer_store_dwordx4 v[24:27], v5, s[32:35], 0 offen
    buffer_store_dwordx4 v[28:31], v5, s[32:35], 0 offen offset:16
    s_endpgm
    """)


P0_GRID = 192 + 54 + 72 + 81


def k_p0():
    a = A()
    n = "p0"
    prologue(a, P0_GRID, n)
    a(f"""
    s_cmp_ge_u32 s2, 192
    s_cbranch_scc1 {n}_r1
    """)
    role_u0(a, n + "a")
    a(f"{n}_r1:\n s_cmp_ge_u32 s2, 246\n s_cbranch_scc1 {n}_r2")
    role_wop(a, n + "c", 192)
    a(f"{n}_r2:\n s_cmp_ge_u32 s2, 318\n s_cbranch_scc1 {n}_r3")
    role_filter(a, n + "d", 246)
    a(f"{n}_r3:")
    role_wot(a, n + "e", 318)
    a(f"{n}_exit:\n s_endpgm")
    return a.text()


def o_steps(a, vm, vA, srdA, vB, srdB, vX, srdX):
    steps = []
    for i in range(9):
        def issue(base, i=i):
            if i < 8:
                a(f"s_add_u32 s42, s50, {i * 65536}")
                for tb in range(2):
                    a(f"buffer_load_dwordx4 {vr(base + 12 + 4 * tb, 4)}, v{vB}, {sr(srdB, 4)}, s42 offen offset:{512 * tb}")
                    vm.issue()
                sreg, imm = 43, i * 18432
            else:
                for d in range(4):
                    a(f"s_add_u32 s42, s51, {d * 8192}")
                    for tb in range(2):
                        a(f"buffer_load_dword v{base + 12 + 4 * tb + d}, v{vX}, {sr(srdX, 4)}, s42 offen offset:{128 * tb}")
                        vm.issue()
                sreg, imm = 49, 0
            if isinstance(vA, int):
                ld_blk(a, vm, base, 3, vA, srdA, sreg, imm)
            else:
                ld_blk(a, vm, base, 3, vA[0], srdA, sreg, imm, tile_stride=vA[1])
        steps.append(dict(issue=issue))
    return steps


def o_setup(a, vB, vX):
    a(f"""
    s_mul_i32 s43, s40, {8 * 18432}
    s_add_u32 s49, s40, 32
    s_mul_i32 s49, s49, 18432
    s_lshl_b32 s50, s40, 19
    s_lshl_b32 s51, s40, 16
    s_lshl_b32 s41, s46, 6
    v_add_u32 v4, s41, v2
    v_lshl_add_u32 v{vB}, v3, 11, v4
    v_lshlrev_b32 v{vB}, 4, v{vB}
    v_lshl_add_u32 v{vX}, v3, 13, v4
    v_lshlrev_b32 v{vX}, 2, v{vX}
    """)


def k_p4():
    a = A()
    n = "p4"
    vm = VM(a)
    prologue(a, 192, n)
    tile_ids(a)
    a("s_mul_i32 s48, s47, 96")
    t1_a_addr(a, 9, 48)
    o_setup(a, 10, 11)
    u_addr(a, 12)
    a("s_waitcnt lgkmcnt(0)")
    srd(a, 24, 20, TABB, WOP)
    srd(a, 28, 20, 64 * 32768, OB)
    srd(a, 52, 20, 32 * 8192, OX)
    srd(a, 32, 20, 144 * 16384, UB)
    srd(a, 36, 20, 6 * 8192, SSP)
    OLD = RING0 + 120

    def oldU():
        for tt in range(6):
            a(f"s_mov_b32 s42, {(tt >> 1) * 131072}")
            a(f"buffer_load_dwordx2 {vr(OLD + 2 * tt, 2)}, v12, s[32:35], s42 offen offset:{(tt & 1) * 256}")
            vm.issue()
    gemm(a, vm, o_steps(a, vm, 9, 24, 10, 28, 11, 52), 6, after_initial=oldU)
    u_epilogue(a, n, 12, 32, 36, old=OLD)
    a(f"{n}_exit:\n s_endpgm")
    return a.text()


def k_p8():
    a = A()
    n = "p8"
    vm = VM(a)
    prologue(a, 192, n)
    tile_ids(a)
    xor_row(a, 9)
    a(f"""
    s_mul_i32 s48, s47, 96
    v_lshrrev_b32 v4, 2, v9
    v_mul_u32_u24 v4, 12, v4
    v_and_b32 v9, 3, v9
    v_add3_u32 v9, v9, v4, s48
    v_mul_u32_u24 v4, 576, v3
    v_add_u32 v9, v9, v4
    v_lshlrev_b32 v9, 4, v9
    """)
    o_setup(a, 10, 11)
    a(f"""
    v_lshl_add_u32 v12, v3, 12, v4
    v_lshlrev_b32 v12, 3, v12
    v_add_u32 v13, 16384, v12
    s_mul_i32 s56, s40, {9 * 65536}
    s_mul_i32 s57, s40, {9 * 18432}
    """)
    srd_tab(a, 60, "T2", TABB)
    s_of_p_rows(a, 14, 4)
    a(f"""
    s_mul_i32 s41, s47, 192
    s_mul_i32 s42, s40, 48
    s_add_u32 s41, s41, s42
    v_mul_u32_u24 v14, 1152, v14
    v_mul_u32_u24 v4, 24, v3
    v_add3_u32 v14, v14, v4, s41
    s_waitcnt lgkmcnt(0)
    """)
    srd(a, 24, 20, TABB, WOT)
    srd(a, 28, 20, 64 * 32768, OB)
    srd(a, 52, 20, 32 * 8192, OX)
    srd(a, 32, 20, 144 * 16384, UB)
    srd(a, 36, 16, S * N * 2)
    steps = []
    for i in range(9):
        def issue(base, i=i):
            a(f"s_add_u32 s42, s56, {i * 65536}")
            for tb in range(2):
                for q in range(2):
                    a(f"buffer_load_dwordx2 {vr(base + 12 + 4 * tb + 2 * q, 2)}, v{12 + q}, s[32:35], s42 offen offset:{256 * tb}")
                    vm.issue()
            ld_blk(a, vm, base, 3, 9, 60, 57, i * 18432, tile_stride=64)
        steps.append(dict(issue=issue))
    steps += o_steps(a, vm, (9, 64), 24, 10, 28, 11, 52)
    gemm(a, vm, steps, 7)
    P = RING0 + 80
    for tb in range(2):
        p = P + 8 * tb
        for ta in range(3):
            acc = ACC0 + 16 * (2 * ta + tb)
            a(f"v_cvt_pk_bf16_f32 v{p + 2 * ta}, v{acc}, v{acc + 1}\n v_cvt_pk_bf16_f32 v{p + 2 * ta + 1}, v{acc + 2}, v{acc + 3}")
        a(f"""
        s_mov_b32 s42, {9216 * tb}
        buffer_store_dwordx4 {vr(p, 4)}, v14, s[36:39], s42 offen
        buffer_store_dwordx2 {vr(p + 4, 2)}, v14, s[36:39], s42 offen offset:16
        """)
    a(f"{n}_exit:\n s_endpgm")
    return a.text()
```

```python
from common import *

SLOT = 32768
NSL = 5
QKV_LDS = NSL * SLOT
AC = 16
FRG = 80
T = 112


def dma(a, c):
    sl = (c % NSL) * SLOT
    a(f"s_add_u32 m0, s50, {sl}")
    for q in range(4):
        a(f"s_add_u32 s42, s48, {c * 16 * 16384 + q * (16384 - 1024)}")
        a(f"buffer_load_dwordx4 v5, s[24:27], s42 offen offset:{q * 1024} lds")
    a(f"s_add_u32 m0, s50, {sl + 16384}")
    for kq in range(2):
        a(f"s_add_u32 s42, s49, {c * 8 * 32768 + kq * (32768 - 2048)}")
        for hf in range(2):
            a(f"buffer_load_dwordx4 v5, s[28:31], s42 offen offset:{kq * 2048 + hf * 1024} lds")


def red32(a, v, t):
    for m in ("quad_perm:[1,0,3,2]", "quad_perm:[2,3,0,1]", "row_half_mirror", "row_mirror"):
        a(f"v_max_f32_dpp v{v}, v{v}, v{v} {m} row_mask:0xf bank_mask:0xf")
    a(f"""
    v_mov_b32 v{t}, v{v}
    v_permlane16_swap_b32 v{v}, v{t}
    v_max_f32 v{v}, v{v}, v{t}
    """)


def mainloop(a, ch):
    def reads(c, ks, buf):
        sl = c % NSL
        ua, wa = 8 + (sl >> 1), 11 + (sl >> 1)
        o = (sl & 1) * SLOT
        f = FRG + 16 * buf
        for tp in range(2):
            for q in range(2):
                a(f"ds_read_b64 {vr(f + 4 * tp + 2 * q, 2)}, v{ua} offset:{o + (4 * ks + q) * 1024 + tp * 256}")
        for x in range(2):
            a(f"ds_read_b128 {vr(f + 8 + 4 * x, 4)}, v{wa} offset:{o + 2 * ks * 2048 + x * 512}")

    def comp(first, buf):
        f = FRG + 16 * buf
        for x in range(2):
            for tp in range(2):
                acc = AC + 32 * x + 16 * tp
                c_ = "0" if first else vr(acc, 16)
                U, W = vr(f + 4 * tp, 4), vr(f + 8 + 4 * x, 4)
                if ch == 1 and x == 0:
                    a(f"v_mfma_f32_32x32x16_bf16 {vr(acc, 16)}, {U}, {W}, {c_}")
                else:
                    a(f"v_mfma_f32_32x32x16_bf16 {vr(acc, 16)}, {W}, {U}, {c_}")
                if x == 0:
                    for q in range(4):
                        src = f + 4 * tp + q
                        if first and q == 0:
                            a(f"v_and_b32 v4, v14, v{src}")
                            src = 4
                        cc = "0" if (first and q == 0) else f"v{T + tp}"
                        a(f"v_dot2_f32_bf16 v{T + tp}, v{src}, v{src}, {cc}")
    for c in range(9):
        a(f"s_waitcnt vmcnt({8 * min(3, 8 - c)})\n s_barrier")
        reads(c, 0, 0)
        if c + 4 < 9:
            dma(a, c + 4)
        for ks in range(4):
            if ks < 3:
                reads(c, ks + 1, (ks + 1) & 1)
                a("s_waitcnt lgkmcnt(6)")
            else:
                a("s_waitcnt lgkmcnt(0)")
            comp(c == 0 and ks == 0, ks & 1)


def rstd(a):
    a(f"""
    v_permlane32_swap_b32 v{T}, v{T + 1}
    v_mov_b32 v4, {f32bits(EPS):#x}
    v_add_f32 v{T + 2}, v{T}, v{T + 1}
    v_fmamk_f32 v{T + 2}, v{T + 2}, {f32bits(1 / 576):#x}, v4
    v_rsq_f32 v{T + 2}, v{T + 2}
    s_nop 0
    v_mov_b32 v{T + 4}, v{T + 2}
    v_mov_b32 v{T + 5}, v{T + 2}
    v_permlane32_swap_b32 v{T + 4}, v{T + 5}
    """)


def kernels():
    a = A()
    n = "qkv"
    prologue(a, 256, n)
    a(f"""
    s_and_b32 s41, s2, 7
    s_lshr_b32 s42, s2, 3
    s_lshr_b32 s46, s41, 1
    s_lshl_b32 s46, s46, 2
    s_and_b32 s43, s42, 3
    s_add_u32 s46, s46, s43
    s_and_b32 s47, s41, 1
    s_lshl_b32 s47, s47, 3
    s_lshr_b32 s43, s42, 2
    s_add_u32 s47, s47, s43
    s_and_b32 s44, s40, 1
    s_lshr_b32 s45, s40, 1
    v_lshlrev_b32 v5, 4, v1
    s_lshl_b32 s48, s40, 16
    s_lshl_b32 s41, s46, 10
    s_add_u32 s48, s48, s41
    s_lshl_b32 s49, s40, 16
    s_lshl_b32 s41, s47, 11
    s_add_u32 s49, s49, s41
    s_lshl_b32 s50, s40, 12
    s_waitcnt lgkmcnt(0)
    """)
    srd(a, 24, 20, 144 * 16384, UB)
    srd(a, 28, 20, 72 * 32768, WP)
    for c in range(4):
        dma(a, c)
    srd(a, 32, 20, 32 * 65536, QI)
    srd(a, 36, 20, 32 * KVS, KV)
    srd(a, 52, 20, 32 * 8192, QX)
    srd(a, 56, 20, 32 * 256, KMX)
    a(f"""
    s_lshl_b32 s41, s44, 6
    v_add_u32 v15, s41, v2
    v_lshl_add_u32 v8, v3, 8, v15
    v_lshlrev_b32 v8, 3, v8
    v_add_u32 v9, {2 * SLOT}, v8
    v_add_u32 v10, {4 * SLOT}, v8
    s_lshl_b32 s41, s45, 6
    v_lshl_add_u32 v11, v3, 7, v2
    v_add_u32 v11, s41, v11
    v_lshlrev_b32 v11, 4, v11
    v_add_u32 v11, 16384, v11
    v_add_u32 v12, {2 * SLOT}, v11
    v_add_u32 v13, {4 * SLOT}, v11
    v_cmp_eq_u32 vcc, 0, v3
    v_mov_b32 v14, -1
    v_mov_b32 v4, 0xffff
    v_cndmask_b32 v14, v14, v4, vcc
    s_mul_i32 s60, s47, {2 * KVS}
    s_mul_i32 s41, s46, {CH}
    s_add_u32 s60, s60, s41
    s_lshl_b32 s61, s46, 1
    s_add_u32 s61, s61, s44
    s_lshl_b32 s61, s61, 3
    s_lshl_b32 s41, s47, 9
    s_add_u32 s61, s61, s41
    s_cmp_eq_u32 s45, 0
    s_cbranch_scc0 {n}_ch1
    """)
    mainloop(a, 0)
    rstd(a)
    a(f"""
    v_lshlrev_b32 v6, 4, v15
    v_lshl_add_u32 v7, v3, 11, v6
    v_lshl_add_u32 v6, v3, 15, v6
    s_lshl_b32 s62, s47, 17
    s_lshl_b32 s41, s46, 11
    s_add_u32 s62, s62, s41
    """)
    P = FRG
    for x in range(2):
        a(f"s_add_u32 s63, s62, {x * 65536}\n s_add_u32 s64, s60, {x * KVS}")
        for tp in range(2):
            acc = AC + 32 * x + 16 * tp
            p = P + 8 * (2 * x + tp)
            for q in range(8):
                a(f"v_pk_mul_f32 {vr(acc + 2 * q, 2)}, {vr(acc + 2 * q, 2)}, {vr(T + 4, 2)} op_sel:[0,{tp}] op_sel_hi:[1,{tp}]")
                a(f"v_cvt_pk_bf16_f32 v{p + q}, v{acc + 2 * q}, v{acc + 2 * q + 1}")
            a(f"""
            buffer_store_dwordx4 {vr(p, 4)}, v6, s[32:35], s63 offen offset:{tp * 512}
            buffer_store_dwordx4 {vr(p + 4, 4)}, v7, s[36:39], s64 offen offset:{tp * 512}
            """)
            nn = T + 8 + 2 * x + tp
            for q in range(4):
                cc = "0" if q == 0 else f"v{nn}"
                a(f"v_dot2_f32_bf16 v{nn}, v{p + 4 + q}, v{p + 4 + q}, {cc}")
        a(f"""
        v_permlane32_swap_b32 v{T + 8 + 2 * x}, v{T + 9 + 2 * x}
        v_add_f32 v{T + 8 + 2 * x}, v{T + 8 + 2 * x}, v{T + 9 + 2 * x}
        """)
    a(f"""
    v_permlane32_swap_b32 v{T + 8}, v{T + 10}
    v_max_f32 v{T + 8}, v{T + 8}, v{T + 10}
    """)
    red32(a, T + 8, T + 9)
    a(f"""
    v_lshlrev_b32 v6, 8, v3
    v_cmp_eq_u32 vcc, 0, v2
    s_and_saveexec_b64 s[66:67], vcc
    buffer_store_dword v{T + 8}, v6, s[56:59], s61 offen
    s_endpgm
    {n}_ch1:
    """)
    mainloop(a, 1)
    rstd(a)
    RS = T + 16
    a(f"""
    s_lshl_b32 s41, s44, 8
    v_lshl_add_u32 v6, v1, 2, s41
    ds_write_b32 v6, v{T + 2}
    v_lshl_add_u32 v6, v3, 4, s41
    s_waitcnt lgkmcnt(0)
    """)
    for tp in range(2):
        for g in range(4):
            a(f"ds_read_b128 {vr(RS + 16 * tp + 4 * g, 4)}, v6 offset:{(32 * tp + 8 * g) * 4}")
    a(f"""
    v_lshlrev_b32 v6, 2, v15
    v_mul_u32_u24 v4, {KVS}, v3
    v_add_u32 v7, v4, v6
    v_lshl_add_u32 v6, v3, 13, v6
    s_lshl_b32 s62, s47, 14
    s_lshl_b32 s41, s46, 9
    s_add_u32 s62, s62, s41
    v_lshrrev_b32 v8, 4, v15
    v_bfe_u32 v9, v15, 2, 1
    v_lshl_add_u32 v8, v8, 1, v9
    v_mul_u32_u24 v8, {VP}, v8
    v_bfe_u32 v9, v15, 3, 1
    v_lshl_add_u32 v8, v9, 3, v8
    v_and_b32 v9, 3, v15
    v_lshl_add_u32 v8, v9, 1, v8
    v_add_u32 v8, v8, v4
    v_mov_b32 v9, 0x3f80
    s_add_u32 s63, s60, {CH_K2}
    s_add_u32 s64, s60, {CH_V}
    """)
    for tp in range(2):
        acc = AC + 32 + 16 * tp
        p = P + 4 * tp
        for q in range(3):
            a(f"v_pk_mul_f32 {vr(acc + 2 * q, 2)}, {vr(acc + 2 * q, 2)}, {vr(T + 4, 2)} op_sel:[0,{tp}] op_sel_hi:[1,{tp}]")
            a(f"v_cvt_pk_bf16_f32 v{p + q}, v{acc + 2 * q}, v{acc + 2 * q + 1}")
        o = tp * 4 * VP
        a(f"""
        buffer_store_dword v{p}, v6, s[52:55], s62 offen offset:{tp * 128}
        buffer_store_dword v{p + 1}, v7, s[36:39], s63 offen offset:{tp * 128}
        buffer_store_short v{p + 2}, v8, s[36:39], s64 offen offset:{o + 256}
        buffer_store_short_d16_hi v{p + 2}, v8, s[36:39], s64 offen offset:{o + 272}
        buffer_store_short v9, v8, s[36:39], s64 offen offset:{o + 288}
        v_dot2_f32_bf16 v{T + 8 + tp}, v{p + 1}, v{p + 1}, 0
        """)
    a(f"v_max_f32 v{T + 8}, v{T + 8}, v{T + 9}")
    red32(a, T + 8, T + 9)
    a(f"""
    v_lshrrev_b32 v6, 4, v2
    v_mul_u32_u24 v6, {KVS}, v6
    v_and_b32 v7, 15, v2
    v_lshl_add_u32 v6, v7, 4, v6
    s_lshl_b32 s41, s44, 3
    v_add_u32 v7, s41, v3
    v_mul_u32_u24 v7, {VP}, v7
    v_add_u32 v6, v6, v7
    s_waitcnt lgkmcnt(0)
    """)
    for tp in range(2):
        acc = AC + 16 * tp
        p = P + 8 + 8 * tp
        for q in range(8):
            a(f"v_pk_mul_f32 {vr(acc + 2 * q, 2)}, {vr(acc + 2 * q, 2)}, {vr(RS + 16 * tp + 2 * q, 2)}")
            a(f"v_cvt_pk_bf16_f32 v{p + q}, v{acc + 2 * q}, v{acc + 2 * q + 1}")
        for m in range(2):
            a(f"buffer_store_dwordx4 {vr(p + 4 * m, 4)}, v6, s[36:39], s64 offen offset:{(4 * tp + 2 * m) * VP}")
    a(f"""
    v_lshlrev_b32 v6, 8, v3
    v_cmp_eq_u32 vcc, 0, v2
    s_and_saveexec_b64 s[66:67], vcc
    buffer_store_dword v{T + 8}, v6, s[56:59], s61 offen offset:4
    {n}_exit:
    s_endpgm
    """)
    return [("qkv_kernel", a.text(), 160)]


def launch():
    return ("qkv_kernel", 256, 256, QKV_LDS)
```

```python
import sys, importlib
import numpy as np
from common import *
import k_gemm

NAME = "interleave_layers__spectral_gfnet__softmax_full_mha__prompt"
HDR = open(f"cdna_kernels/{NAME}.s.ref").read().split("; Override launch")[0]


def tables():
    L = []
    for i in range(N):
        L.append(f".set cs{i}, 0x{bf16bits(np.sqrt(2 / N) * np.cos(2 * np.pi * i / N)):04x}")
    L.append(f".set cs576, 0x{bf16bits(1 / np.sqrt(N)):04x}")
    L.append(f".set cs577, 0x{bf16bits(-1 / np.sqrt(N)):04x}")
    L.append(".altmacro")
    L.append(""".macro E8 a,b,c,d,e,f,g,h
.short cs\\a,cs\\b,cs\\c,cs\\d,cs\\e,cs\\f,cs\\g,cs\\h
.endm""")
    L.append(""".p2align 8
T1:
.set kb,0
.rept 72
E8 576,577,576,577,576,577,576,577
E8 576,576,576,576,576,576,576,576
.set f,1
.rept 287
.set x,(8*kb*f)%576
E8 %(x),%((x+f)%576),%((x+2*f)%576),%((x+3*f)%576),%((x+4*f)%576),%((x+5*f)%576),%((x+6*f)%576),%((x+7*f)%576)
.set x,x+144
E8 %(x%576),%((x+f)%576),%((x+2*f)%576),%((x+3*f)%576),%((x+4*f)%576),%((x+5*f)%576),%((x+6*f)%576),%((x+7*f)%576)
.set f,f+1
.endr
.set kb,kb+1
.endr
.p2align 8
T2:
.set d,0
.rept 576
E8 %(576+(d%2)),576,%(d),%((d+144)%576),%((2*d)%576),%((2*d+144)%576),%((3*d)%576),%((3*d+144)%576)
.set d,d+1
.endr
.set kb,1
.rept 71
.set d,0
.rept 576
.set x,(4*kb*d)%576
E8 %(x),%((x+144)%576),%((x+d)%576),%((x+d+144)%576),%((x+2*d)%576),%((x+2*d+144)%576),%((x+3*d)%576),%((x+3*d+144)%576)
.set d,d+1
.endr
.set kb,kb+1
.endr
.noaltmacro
.p2align 8
CM:""")
    cm = cmap()
    for i in range(0, 2048, 8):
        w = []
        for q in range(i, i + 8, 2):
            c, isq = cm[q]
            if c >= 0:
                assert cm[q + 1][0] == c + 1 and c % 2 == 0 and cm[q + 1][1] == isq
            w += [f"0x{(2 * c if c >= 0 else 0x40000000):x}", f"0x{f32bits(QSCALE if isq else 1.0):x}"]
        L.append(".long " + ",".join(w))
    return "\n".join(L) + "\n"


def build(upto=9):
    ks = []
    launches = []
    mods = {}
    ks.append(("p0_kernel", k_gemm.k_p0(), 256))
    launches.append(("p0_kernel", k_gemm.P0_GRID, 256, k_gemm.GEMM_LDS))
    if upto > 1:
        import k_fft
        ks += k_fft.kernels()
        launches.append(k_fft.launch(1))
    if upto > 2:
        import k_qkv
        ks += k_qkv.kernels()
        launches.append(k_qkv.launch())
    if upto > 3:
        import k_attn
        ks += k_attn.kernels()
        launches.append(k_attn.launch())
    if upto > 4:
        ks.append(("p4_kernel", k_gemm.k_p4(), 256))
        launches.append(("p4_kernel", 192, 256, k_gemm.GEMM_LDS))
    if upto > 5:
        launches.append(k_fft.launch(5))
    if upto > 6:
        launches.append(k_qkv.launch())
    if upto > 7:
        launches.append(k_attn.launch())
    if upto > 8:
        ks.append(("p8_kernel", k_gemm.k_p8(), 256))
        launches.append(("p8_kernel", 192, 256, k_gemm.GEMM_LDS))
    out = HDR
    for (k, g, b, l) in launches:
        out += f"; @launch kernel={k} grid=({g},1,1) block=({b},1,1) lds={l}\n"
    out += '.amdgcn_target "amdgcn-amd-amdhsa--gfx950"\n.text\n'
    for (k, t, v) in ks:
        out += khead(k) + t
    out += '.section .rodata,"a"\n'
    for (k, t, v) in ks:
        out += kd(k, v)
    out += tables()
    return out


if __name__ == "__main__":
    upto = int(sys.argv[1]) if len(sys.argv) > 1 else 9
    dst = sys.argv[2] if len(sys.argv) > 2 else f"cdna_kernels/{NAME}.s"
    open(dst, "w").write(build(upto))
    print("wrote", dst)
```

```python
import numpy as np
from asmlib import A, vr, sr

N = 576
S = 2048
UB = 0x000000
WT = 0x240000
WP = 0x480000
WOP = 0x6C0000
WOT = 0x780000
SSP = 0x840000
KMX = 0x850000
QI = 0x880000
QX = 0xA80000
KV = 0xB00000
KVS = 0x26000
OB = 0x1000000
OX = 0x1200000
WS_END = 0x1300000

CH_K0, CH_K1, CH_K2, CH_V = 0, 2048, 4096, 4608
VP = 304
CH = 4608 + 16 * VP
KV_BYTES = 16 * CH

EPS = 1e-5


def f32bits(x):
    return int(np.array([x], np.float32).view(np.uint32)[0])


def bf16bits(x):
    u = int(np.array([x], np.float32).view(np.uint32)[0])
    return ((u + 0x7FFF + ((u >> 16) & 1)) >> 16) & 0xFFFF


def s_of_p(p):
    w, t, g, c, r = p >> 9, (p >> 8) & 1, (p >> 6) & 3, (p >> 2) & 15, p & 3
    return 32 * (16 * w + 4 * g + r) + 16 * t + c


def cmap():
    m = []
    for hp in range(16):
        hA, hB = 2 * hp, 2 * hp + 1
        for hd in (hA, hB):
            for rho in range(32):
                a, h, b = rho >> 3, (rho >> 2) & 1, rho & 3
                if a < 2:
                    m.append((0 * 576 + hd * 18 + 8 * h + 4 * a + b, 1))
                else:
                    m.append((1 * 576 + hd * 18 + 8 * h + 4 * (a - 2) + b, 0))
        for c in range(32):
            hd = hA if c < 16 else hB
            m.append((2 * 576 + hd * 18 + (c & 15), 0))
        for rho in range(32):
            a, h, b = rho >> 3, (rho >> 2) & 1, rho & 3
            hd = hB if h else hA
            if a == 0:
                m.append(((b >> 1) * 576 + hd * 18 + 16 + (b & 1), 1 if b < 2 else 0))
            elif a == 1 and b < 2:
                m.append((2 * 576 + hd * 18 + 16 + b, 0))
            else:
                m.append((-1, 0))
    return m


def row_of_c2(c2):
    if c2 < 512:
        return 18 * (c2 >> 4) + (c2 & 15)
    return 18 * ((c2 - 512) >> 1) + 16 + (c2 & 1)


QSCALE = 18 ** -0.5 * np.log2(np.e)


class VM:
    def __init__(self, a):
        self.a = a
        self.n = 0

    def issue(self, k=1):
        self.n += k
        return self.n

    def wait(self, mark):
        pend = self.n - mark
        self.a(f"s_waitcnt vmcnt({min(pend, 63)})")


import os
PROF = bool(os.environ.get("PROF"))
PROFB = 0x2000000


def stamp(a, i):
    if PROF:
        a(f"s_memrealtime s[{72 + 2 * i}:{73 + 2 * i}]")


def prof_tail():
    t = """
prof_exit0:
  s_endpgm
prof_end:
  s_memrealtime s[86:87]
  s_waitcnt vmcnt(0) lgkmcnt(0)
  s_memrealtime s[88:89]
  s_mov_b64 exec, 1
  s_bfe_u32 s41, s18, 0x40009
  s_lshl_b32 s41, s41, 9
  s_add_u32 s41, s41, s2
  s_lshl_b32 s41, s41, 3
  s_add_u32 s41, s41, s90
  s_lshl_b32 s41, s41, 6
  s_add_u32 s24, s20, %d
  s_addc_u32 s25, s21, 0
  s_mov_b32 s26, 0x400000
  s_mov_b32 s27, 0x20000
  s_getreg_b32 s91, hwreg(HW_REG_HW_ID)
  s_getreg_b32 s92, hwreg(HW_REG_XCC_ID)
  s_waitcnt lgkmcnt(0)
  v_mov_b32 v0, 0
""" % PROFB
    for i in range(9):
        t += f"  v_mov_b32 v{4 + i}, s{72 + 2 * i}\n"
    t += """  v_mov_b32 v13, s91
  v_mov_b32 v14, s92
  v_mov_b32 v15, 0x1234
  s_nop 4
  buffer_store_dwordx4 v[4:7], v0, s[24:27], s41 offen
  buffer_store_dwordx4 v[8:11], v0, s[24:27], s41 offen offset:16
  buffer_store_dwordx4 v[12:15], v0, s[24:27], s41 offen offset:32
  s_endpgm
"""
    return t


def prologue(a, grid, name):
    if PROF:
        for i in range(9):
            a(f"s_mov_b32 s{72 + 2 * i}, 0")
        stamp(a, 0)
    a(f"""
    s_cmp_ge_u32 s2, {grid}
    s_cbranch_scc1 {"prof_exit0" if PROF else name + "_exit"}
    s_load_dwordx16 s[4:19], s[0:1], 0
    s_load_dwordx2 s[20:21], s[0:1], 64
    v_lshrrev_b32 v4, 6, v0
    v_and_b32 v1, 63, v0
    v_readfirstlane_b32 s40, v4
    v_and_b32 v2, 31, v0
    v_bfe_u32 v3, v0, 5, 1
    """)
    if PROF:
        a("s_mov_b32 s90, s40")


def srd(a, d, base, nbytes, off=0):
    if off:
        a(f"s_add_u32 s{d}, s{base}, {off}\n s_addc_u32 s{d + 1}, s{base + 1}, 0")
    else:
        a(f"s_mov_b32 s{d}, s{base}\n s_mov_b32 s{d + 1}, s{base + 1}")
    a(f"s_mov_b32 s{d + 2}, {nbytes}\n s_mov_b32 s{d + 3}, 0x20000")


def srd_tab(a, d, sym, nbytes):
    a(f"""
    s_getpc_b64 s[{d}:{d + 1}]
    s_add_u32 s{d}, s{d}, {sym}@rel32@lo+4
    s_addc_u32 s{d + 1}, s{d + 1}, {sym}@rel32@hi+12
    s_mov_b32 s{d + 2}, {nbytes}
    s_mov_b32 s{d + 3}, 0x20000
    """)


def kd(name, vgpr=256, sgpr=102):
    acc = (vgpr + 3) // 4 * 4
    return f""".p2align 6
.amdhsa_kernel {name}
  .amdhsa_next_free_vgpr {vgpr}
  .amdhsa_next_free_sgpr {sgpr}
  .amdhsa_accum_offset {acc}
  .amdhsa_group_segment_fixed_size 0
  .amdhsa_kernarg_size 72
  .amdhsa_user_sgpr_count 2
  .amdhsa_user_sgpr_kernarg_segment_ptr 1
  .amdhsa_system_sgpr_workgroup_id_x 1
.end_amdhsa_kernel
"""


def khead(name):
    return f".globl {name}\n.p2align 8\n.type {name},@function\n{name}:\n"


ACC0 = 16
RING0 = 112
RED_BYTES = 4 * 3 * 6 * 1024


def gemm(a, vm, steps, depth, stage0=None, after_initial=None, ldsbase=None):
    n = len(steps)
    marks = [None] * n
    for i in range(min(depth, n)):
        steps[i]["issue"](RING0 + 20 * (i % depth))
        marks[i] = vm.n
    stamp(a, 1)
    if after_initial:
        after_initial()
    a("v_lshlrev_b32 v8, 4, v1")
    if ldsbase is not None:
        a(f"v_add_u32 v8, s{ldsbase}, v8")
    for ap in (1, 2, 3):
        a(f"s_xor_b32 s41, s40, {ap}\n s_mul_i32 s41, s41, {3 * 6144}\n s_add_u32 s41, s41, {(ap - 1) * 6144}\n v_add_u32 v{4 + ap}, s41, v8")
    a(f"s_mul_i32 s41, s40, {3 * 6144}\n v_add_u32 v8, s41, v8")
    for i in range(n):
        base = RING0 + 20 * (i % depth)
        vm.wait(marks[i])
        if i == 0:
            stamp(a, 2)
        bb = base + 12
        if steps[i].get("tr2"):
            st = stage0 + 8 * (i % 2)
            for q in range(4):
                a(f"v_perm_b32 v{st + q}, v{bb + 2 * q + 1}, v{bb + 2 * q}, s44")
                a(f"v_perm_b32 v{st + 4 + q}, v{bb + 2 * q + 1}, v{bb + 2 * q}, s45")
            bb = st
        for ta in range(3):
            for tb in range(2):
                acc = ACC0 + 16 * (2 * ta + tb)
                c = "0" if i == 0 else vr(acc, 16)
                a(f"v_mfma_f32_32x32x16_bf16 {vr(acc, 16)}, {vr(base + 4 * ta, 4)}, {vr(bb + 4 * tb, 4)}, {c}")
        if i + depth < n:
            steps[i + depth]["issue"](base)
            marks[i + depth] = vm.n
    stamp(a, 3)
    for tt in range(6):
        for ap in (1, 2, 3):
            a(f"ds_write_b128 v{4 + ap}, {vr(ACC0 + 16 * tt + 4 * ap, 4)} offset:{tt * 1024}")
    a("s_waitcnt lgkmcnt(0)\n s_barrier")
    stamp(a, 4)
    R = RING0
    for tt in range(6):
        for sl in range(3):
            a(f"ds_read_b128 {vr(R + 12 * tt + 4 * sl, 4)}, v8 offset:{sl * 6144 + tt * 1024}")
    for tt in range(6):
        a(f"s_waitcnt lgkmcnt({min(15, 3 * (5 - tt))})")
        acc = ACC0 + 16 * tt
        r = R + 12 * tt
        for q in (0, 2):
            a(f"v_pk_add_f32 {vr(r + q, 2)}, {vr(r + q, 2)}, {vr(r + 4 + q, 2)}")
            a(f"v_pk_add_f32 {vr(acc + q, 2)}, {vr(acc + q, 2)}, {vr(r + 8 + q, 2)}")
        for q in (0, 2):
            a(f"v_pk_add_f32 {vr(acc + q, 2)}, {vr(acc + q, 2)}, {vr(r + q, 2)}")


def ld_blk(a, vm, dst, nt, voff, srdn, soff_reg, soff_imm, tile_stride=512):
    if soff_reg is None:
        a(f"s_mov_b32 s42, {soff_imm}")
    else:
        a(f"s_add_u32 s42, s{soff_reg}, {soff_imm}")
    for t in range(nt):
        a(f"buffer_load_dwordx4 {vr(dst + 4 * t, 4)}, v{voff}, {sr(srdn, 4)}, s42 offen offset:{t * tile_stride}")
        vm.issue()
```

```python
from common import *
from k_qkv import red32

ATT_LDS = 163840
FLAG = 155648
MXA = 155648 + 1024

OA, OBB = 16, 32
SB = (48, 64)
P = 80
QM = (88, 92)
QE = (96, 98)
KM = (100, 104)
KE = (108, 110)
VF = (112, 120)
T = 128
ROUNDS = 19


def kreads(a, j, buf):
    o = (j // 4) * 2 * CH
    kt = j % 4
    a(f"ds_read_b128 {vr(KM[buf], 4)}, v6 offset:{o + kt * 512}")
    a(f"ds_read_b32 v{KE[buf]}, v7 offset:{o + CH_K2 + kt * 128}")


def vreads(a, j, buf):
    o = (j // 4) * 2 * CH
    kt = j % 4
    for m in range(2):
        a(f"ds_read_b128 {vr(VF[buf] + 4 * m, 4)}, v8 offset:{o + CH_V + (2 * (2 * kt + m)) * VP}")


def sext(a, sb, kbuf, tq):
    a(f"v_mfma_f32_32x32x8bf16_1k {vr(SB[sb], 16)}, {vr(KE[kbuf], 2)}, {vr(QE[tq], 2)}, 0")


def smain(a, sb, kbuf, tq):
    a(f"v_mfma_f32_32x32x16_bf16 {vr(SB[sb], 16)}, {vr(KM[kbuf], 4)}, {vr(QM[tq], 4)}, {vr(SB[sb], 16)}")


def pv(a, o, vbuf, m):
    a(f"v_mfma_f32_32x32x16_bf16 {vr(o, 16)}, {vr(VF[vbuf] + 4 * m, 4)}, {vr(P + 4 * m, 4)}, {vr(o, 16)}")


def exps(a, sb, lo, hi):
    for r in range(lo, hi):
        a(f"v_exp_f32 v{SB[sb] + r}, v{SB[sb] + r}")


def cvts(a, sb, lo, hi):
    for r in range(lo, hi):
        a(f"v_cvt_pk_bf16_f32 v{P + r}, v{SB[sb] + 2 * r}, v{SB[sb] + 2 * r + 1}")


def body(a, j):
    kb, nb = j & 1, (j + 1) & 1
    kreads(a, j + 1, nb)
    sext(a, 1, kb, 1)
    exps(a, 0, 0, 4)
    pv(a, OBB, nb, 1)
    exps(a, 0, 4, 8)
    cvts(a, 0, 0, 4)
    smain(a, 1, kb, 1)
    exps(a, 0, 8, 12)
    a("s_waitcnt lgkmcnt(2)")
    pv(a, OA, kb, 0)
    vreads(a, j + 1, nb)
    exps(a, 0, 12, 16)
    cvts(a, 0, 4, 8)
    a("s_waitcnt lgkmcnt(2)")
    sext(a, 0, nb, 0)
    exps(a, 1, 0, 4)
    pv(a, OA, kb, 1)
    exps(a, 1, 4, 8)
    cvts(a, 1, 0, 4)
    smain(a, 0, nb, 0)
    exps(a, 1, 8, 12)
    pv(a, OBB, kb, 0)
    exps(a, 1, 12, 16)
    cvts(a, 1, 4, 8)


def kernels():
    a = A()
    n = "attn"
    prologue(a, 256, n)
    a(f"""
    s_and_b32 s41, s2, 7
    s_lshl_b32 s46, s41, 2
    s_bfe_u32 s41, s2, 0x20003
    s_add_u32 s46, s46, s41
    s_lshr_b32 s47, s2, 5
    s_and_b32 s44, s40, 1
    s_lshr_b32 s45, s40, 1
    s_mov_b32 s48, 0
    v_lshlrev_b32 v5, 4, v1
    s_mul_i32 s49, s46, {KVS}
    s_lshl_b32 s50, s40, 10
    s_add_u32 s49, s49, s50
    s_lshl_b32 s41, s47, 8
    s_lshl_b32 s42, s45, 6
    s_add_u32 s41, s41, s42
    s_lshl_b32 s42, s44, 5
    v_add_u32 v9, s41, v2
    v_add_u32 v9, s42, v9
    v_xor_b32 v10, 32, v9
    v_lshlrev_b32 v4, 15, v3
    v_lshl_add_u32 v11, v9, 4, v4
    v_lshl_add_u32 v12, v10, 4, v4
    v_lshlrev_b32 v9, 2, v9
    v_lshlrev_b32 v10, 2, v10
    v_lshlrev_b32 v13, 3, v2
    s_lshl_b32 s51, s46, 16
    s_lshl_b32 s52, s46, 13
    s_lshl_b32 s53, s46, 8
    s_waitcnt lgkmcnt(0)
    """)
    srd(a, 24, 20, 32 * KVS, KV)
    srd(a, 28, 20, 32 * 65536, QI)
    srd(a, 32, 20, 32 * 8192, QX)
    srd(a, 36, 20, 32 * 256, KMX)
    a(f"""
    buffer_load_dwordx2 {vr(T, 2)}, v13, s[36:39], s53 offen
    buffer_load_dwordx4 {vr(QM[0], 4)}, v11, s[28:31], s51 offen
    buffer_load_dwordx4 {vr(QM[1], 4)}, v12, s[28:31], s51 offen
    buffer_load_dword v{QE[0]}, v9, s[32:35], s52 offen
    buffer_load_dword v{QE[1]}, v10, s[32:35], s52 offen
    {n}_dma:
    s_mov_b32 m0, s50
    s_mov_b32 s42, s49
    """)
    for r in range(ROUNDS):
        a("buffer_load_dwordx4 v5, s[24:27], s42 offen lds")
        if r + 1 < ROUNDS:
            a("s_add_u32 m0, m0, 8192\n s_add_u32 s42, s42, 8192")
    stamp(a, 1)
    srd(a, 28, 20, 64 * 32768, OB)
    srd(a, 32, 20, 32 * 8192, OX)
    a(f"""
    s_mul_i32 s41, s44, {CH}
    v_lshlrev_b32 v13, 4, v2
    v_lshl_add_u32 v13, v3, 11, v13
    v_add_u32 v13, s41, v13
    v_lshlrev_b32 v14, 2, v2
    v_add_u32 v14, s41, v14
    v_bfe_u32 v4, v2, 2, 1
    v_lshlrev_b32 v4, 3, v4
    v_bfe_u32 v15, v2, 3, 1
    v_lshl_add_u32 v4, v15, 2, v4
    v_and_b32 v15, 3, v2
    v_add_u32 v4, v4, v15
    v_min_u32 v15, 18, v2
    v_cmp_gt_u32 vcc, 16, v2
    v_cndmask_b32 v4, v15, v4, vcc
    v_mul_u32_u24 v15, {VP}, v3
    v_lshl_add_u32 v15, v4, 4, v15
    v_add_u32 v15, s41, v15
    v_mov_b32 v{KE[0] + 1}, 0x3f803f80
    v_mov_b32 v{KE[1] + 1}, 0x3f803f80
    v_mov_b32 v4, {FLAG}
    v_mov_b32 v{T + 2}, 0
    ds_write_b32 v4, v{T + 2}
    v_cmp_eq_u32 vcc, 0, v3
    s_cmp_lg_u32 s48, 0
    s_cbranch_scc1 {n}_maxpass
    s_waitcnt vmcnt({ROUNDS})
    v_add_f32 v{T}, v{T}, v{T + 1}
    v_cndmask_b32 v{QE[0]}, 0, v{QE[0]}, vcc
    v_cndmask_b32 v{QE[1]}, 0, v{QE[1]}, vcc
    """)
    red32(a, T, T + 1)
    for tq in range(2):
        t = T + 2 + tq
        a(f"v_dot2_f32_bf16 v{t}, v{QE[tq]}, v{QE[tq]}, 0")
        for q in range(4):
            a(f"v_dot2_f32_bf16 v{t}, v{QM[tq] + q}, v{QM[tq] + q}, v{t}")
    a(f"""
    v_mov_b32 v{T + 4}, v{T + 2}
    v_mov_b32 v{T + 5}, v{T + 3}
    v_permlane32_swap_b32 v{T + 2}, v{T + 4}
    v_permlane32_swap_b32 v{T + 3}, v{T + 5}
    v_add_f32 v{T + 2}, v{T + 2}, v{T + 4}
    v_add_f32 v{T + 3}, v{T + 3}, v{T + 5}
    v_mul_f32 v{T + 2}, v{T + 2}, v{T}
    v_mul_f32 v{T + 3}, v{T + 3}, v{T}
    v_sqrt_f32 v{T + 2}, v{T + 2}
    v_sqrt_f32 v{T + 3}, v{T + 3}
    {n}_setm:
    """)
    for tq in range(2):
        m = T + 2 + tq
        a(f"""
        v_sub_f32 v{m}, 0, v{m}
        v_and_b32 v{T + 4}, 0xffff0000, v{m}
        v_sub_f32 v{m}, v{m}, v{T + 4}
        v_and_b32 v{T + 5}, 0xffff0000, v{m}
        v_sub_f32 v{m}, v{m}, v{T + 5}
        v_lshrrev_b32 v{T + 4}, 16, v{T + 4}
        v_or_b32 v{T + 4}, v{T + 4}, v{T + 5}
        v_and_b32 v{m}, 0xffff0000, v{m}
        v_cndmask_b32 v{QE[tq] + 1}, v{m}, v{T + 4}, vcc
        """)
    a(f"""
    v_mov_b32 v6, v13
    v_mov_b32 v7, v14
    v_mov_b32 v8, v15
    s_mov_b32 s54, 0
    """)
    for r in range(16):
        a(f"v_mov_b32 v{OA + r}, 0\n v_mov_b32 v{OBB + r}, 0")
    for r in range(4):
        a(f"v_mov_b32 v{P + 4 + r}, 0\n v_mov_b32 v{VF[1] + 4 + r}, 0")
    stamp(a, 2)
    a(f"s_waitcnt vmcnt({ROUNDS - 3}) lgkmcnt(0)\n s_barrier")
    stamp(a, 3)
    if PROF:
        a("s_memtime s[82:83]")
    kreads(a, 0, 0)
    vreads(a, 0, 0)
    a("s_waitcnt lgkmcnt(2)")
    sext(a, 0, 0, 0)
    smain(a, 0, 0, 0)
    a(f"{n}_loop:")
    for j in range(3):
        body(a, j)
    a(f"""
    s_bitcmp1_b32 s54, 0
    s_cbranch_scc1 {n}_nobar
    s_cmp_gt_u32 s54, 2
    s_cbranch_scc1 {n}_nobar
    s_waitcnt vmcnt({ROUNDS - 7})
    s_cmp_eq_u32 s54, 0
    s_cbranch_scc1 {n}_bar
    s_waitcnt vmcnt(0)
    {n}_bar:
    s_barrier
    {n}_nobar:
    """)
    body(a, 3)
    a(f"""
    v_add_u32 v6, {2 * CH}, v6
    v_add_u32 v7, {2 * CH}, v7
    v_add_u32 v8, {2 * CH}, v8
    s_add_u32 s54, s54, 1
    s_cmp_lt_u32 s54, 8
    s_cbranch_scc1 {n}_loop
    """)
    pv(a, OBB, 1, 1)
    stamp(a, 4)
    if PROF:
        a("s_memtime s[84:85]")
    a(f"""
    s_mul_i32 s41, s40, 3072
    s_xor_b32 s42, s40, 1
    s_mul_i32 s42, s42, 3072
    v_add_u32 v6, s41, v5
    v_add_u32 v7, s42, v5
    v_mov_b32 v4, {FLAG}
    v_mov_b32 v{T}, {f32bits(2.0 ** -60):#x}
    v_cmp_nge_f32 s[56:57], v{OA + 10}, v{T}
    v_cmp_nge_f32 vcc, v{OBB + 10}, v{T}
    ds_write_b128 v6, {vr(OBB, 4)}
    ds_write_b128 v6, {vr(OBB + 4, 4)} offset:1024
    ds_write_b128 v6, {vr(OBB + 8, 4)} offset:2048
    s_or_b64 vcc, vcc, s[56:57]
    s_cbranch_vccz {n}_noflag
    ds_write_b32 v4, v4
    {n}_noflag:
    s_waitcnt lgkmcnt(0)
    s_barrier
    ds_read_b32 v{T}, v4
    ds_read_b128 {vr(SB[0] + 8, 4)}, v7 offset:2048
    ds_read_b128 {vr(SB[0], 4)}, v7
    ds_read_b128 {vr(SB[0] + 4, 4)}, v7 offset:1024
    s_waitcnt lgkmcnt(3)
    v_readfirstlane_b32 s41, v{T}
    s_cmp_eq_u32 s48, 0
    s_cselect_b32 s41, s41, 0
    s_cmp_lg_u32 s41, 0
    s_cbranch_scc1 {n}_fallback
    s_waitcnt lgkmcnt(2)
    v_add_f32 v{T}, v{OA + 10}, v{SB[0] + 10}
    v_rcp_f32 v{T}, v{T}
    v_pk_add_f32 {vr(OA + 8, 2)}, {vr(OA + 8, 2)}, {vr(SB[0] + 8, 2)}
    s_waitcnt lgkmcnt(0)
    """)
    for q in range(4):
        a(f"v_pk_add_f32 {vr(OA + 2 * q, 2)}, {vr(OA + 2 * q, 2)}, {vr(SB[0] + 2 * q, 2)}")
    for q in range(5):
        a(f"v_pk_mul_f32 {vr(OA + 2 * q, 2)}, {vr(OA + 2 * q, 2)}, {vr(T, 2)} op_sel_hi:[1,0]")
        a(f"v_cvt_pk_bf16_f32 v{P + q}, v{OA + 2 * q}, v{OA + 2 * q + 1}")
    a(f"""
    buffer_store_dwordx4 {vr(P, 4)}, v11, s[28:31], s51 offen
    s_mov_b32 exec_hi, 0
    buffer_store_dword v{P + 4}, v9, s[32:35], s52 offen
    {n}_exit:
    s_endpgm
    {n}_fallback:
    s_waitcnt lgkmcnt(0)
    s_mov_b32 s48, 1
    s_barrier
    s_branch {n}_dma
    {n}_maxpass:
    v_mov_b32 v6, v13
    v_mov_b32 v7, v14
    v_mov_b32 v{QE[0] + 1}, 0
    v_mov_b32 v{QE[1] + 1}, 0
    v_mov_b32 v{T + 2}, 0xff800000
    v_mov_b32 v{T + 3}, 0xff800000
    s_mov_b32 s54, 0
    s_waitcnt vmcnt(0) lgkmcnt(0)
    s_barrier
    {n}_mloop:
    """)
    for kt in range(4):
        kreads(a, kt, 0)
        a("s_waitcnt lgkmcnt(0)")
        for tq in range(2):
            sext(a, tq, 0, tq)
            smain(a, tq, 0, tq)
        for tq in range(2):
            for q in range(8):
                a(f"v_max3_f32 v{T + 2 + tq}, v{SB[tq] + 2 * q}, v{SB[tq] + 2 * q + 1}, v{T + 2 + tq}")
    a(f"""
    v_add_u32 v6, {2 * CH}, v6
    v_add_u32 v7, {2 * CH}, v7
    s_add_u32 s54, s54, 1
    s_cmp_lt_u32 s54, 8
    s_cbranch_scc1 {n}_mloop
    v_mov_b32 v{T + 4}, v{T + 2}
    v_mov_b32 v{T + 5}, v{T + 3}
    v_permlane32_swap_b32 v{T + 2}, v{T + 4}
    v_permlane32_swap_b32 v{T + 3}, v{T + 5}
    v_max_f32 v{T + 2}, v{T + 2}, v{T + 4}
    v_max_f32 v{T + 3}, v{T + 3}, v{T + 5}
    s_lshl_b32 s41, s40, 9
    s_add_u32 s41, s41, {MXA}
    v_lshlrev_b32 v4, 3, v1
    v_add_u32 v6, s41, v4
    s_xor_b32 s41, s41, 512
    v_add_u32 v7, s41, v4
    ds_write_b64 v6, {vr(T + 2, 2)}
    s_waitcnt lgkmcnt(0)
    s_barrier
    ds_read_b64 {vr(T + 4, 2)}, v7
    s_waitcnt lgkmcnt(0)
    v_max_f32 v{T + 2}, v{T + 2}, v{T + 5}
    v_max_f32 v{T + 3}, v{T + 3}, v{T + 4}
    v_cmp_eq_u32 vcc, 0, v3
    s_branch {n}_setm
    """)
    return [("attn_kernel", a.text(), 136)]


def launch():
    return ("attn_kernel", 256, 512, ATT_LDS)
```

```python
from common import *
import k_gemm
from k_gemm import TABB, blk_epilogue, c2row
from k_gen import *

ZB = 0
LB = 16384
LSZ = 32 * 272
FFT_LDS = LB + 2 * LSZ

UO, SS, FW, FR, FI = 16, 24, 48, 56, 64
M1R, M1I, M2, TWC, TWS = 72, 88, 104, 136, 144
ZF, AC, DB, T = 152, 184, 200, 208


def m2(v, t, ri):
    return M2 + 16 * v + 8 * t + 4 * ri


def cmul(a, re, im, c, s_, out, conj_out=False, wconj=True):
    for q in (0, 2):
        tr, ti = T + q, T + 4 + q
        if wconj:
            a(f"v_pk_mul_f32 {vr(tr, 2)}, {vr(re + q, 2)}, {vr(c + q, 2)}")
            a(f"v_pk_mul_f32 {vr(ti, 2)}, {vr(im + q, 2)}, {vr(c + q, 2)}")
            a(f"v_pk_fma_f32 {vr(tr, 2)}, {vr(im + q, 2)}, {vr(s_ + q, 2)}, {vr(tr, 2)}")
            a(f"v_pk_fma_f32 {vr(ti, 2)}, {vr(re + q, 2)}, {vr(s_ + q, 2)}, {vr(ti, 2)} neg_lo:[1,0,0] neg_hi:[1,0,0]")
        else:
            assert conj_out
            a(f"v_pk_mul_f32 {vr(tr, 2)}, {vr(re + q, 2)}, {vr(c + q, 2)}")
            a(f"v_pk_mul_f32 {vr(ti, 2)}, {vr(im + q, 2)}, {vr(c + q, 2)} neg_lo:[1,0] neg_hi:[1,0]")
            a(f"v_pk_fma_f32 {vr(tr, 2)}, {vr(im + q, 2)}, {vr(s_ + q, 2)}, {vr(tr, 2)} neg_lo:[1,0,0] neg_hi:[1,0,0]")
            a(f"v_pk_fma_f32 {vr(ti, 2)}, {vr(re + q, 2)}, {vr(s_ + q, 2)}, {vr(ti, 2)} neg_lo:[1,0,0] neg_hi:[1,0,0]")
    for r in range(4):
        a(f"v_cvt_pk_bf16_f32 v{out + r}, v{T + r}, v{T + 4 + r}")


def role_fft(a):
    a(f"""
    s_lshr_b32 s46, s40, 2
    s_and_b32 s47, s40, 3
    s_lshl_b32 s41, s47, 1
    s_add_u32 s48, s41, s46
    s_lshl_b32 s41, s2, 14
    s_lshl_b32 s42, s48, 11
    s_add_u32 s49, s41, s42
    v_lshlrev_b32 v5, 5, v1
    v_lshlrev_b32 v6, 4, v1
    s_lshl_b32 s50, s48, 10
    s_lshl_b32 s42, s46, 13
    s_add_u32 s41, s41, s42
    s_lshl_b32 s42, s47, 10
    s_add_u32 s51, s41, s42
    s_add_u32 s52, s51, 4096
    s_waitcnt lgkmcnt(0)
    """)
    srd(a, 24, 20, 144 * 16384, UB)
    srd(a, 28, 20, 6 * 8192, SSP)
    srd(a, 32, 20, 288 * 8192, WT)
    a(f"""
    buffer_load_dwordx4 {vr(UO, 4)}, v5, s[24:27], s49 offen
    buffer_load_dwordx4 {vr(UO + 4, 4)}, v5, s[24:27], s49 offen offset:16
    """)
    for j in range(6):
        a(f"buffer_load_dwordx4 {vr(SS + 4 * j, 4)}, v6, s[28:31], s50 offen")
        if j < 5:
            a("s_add_u32 s50, s50, 8192")
    a(f"""
    buffer_load_dwordx4 {vr(FW, 4)}, v6, s[32:35], s51 offen
    buffer_load_dwordx4 {vr(FW + 4, 4)}, v6, s[32:35], s52 offen
    """)
    stamp(a, 1)
    a(f"""
    v_lshrrev_b32 v7, 4, v1
    v_lshlrev_b32 v7, 2, v7
    v_and_b32 v8, 15, v1
    s_lshl_b32 s41, s47, 4
    v_add_u32 v9, s41, v8
    v_cvt_f32_u32 v7, v7
    v_cvt_f32_u32 v10, v9
    v_cvt_f32_u32 v11, v8
    v_mul_f32 v10, {f32bits(1 / 64):#x}, v10
    v_mul_f32 v11, {f32bits(1 / 32):#x}, v11
    v_mul_f32 v12, v7, v10
    v_mul_f32 v13, v7, v11
    """)
    for (ang0, step, R, I) in ((12, 10, M1R, M1I), (13, 11, m2(0, 0, 0), m2(0, 0, 1))):
        for r in range(4):
            if r == 0:
                src = ang0
            else:
                a(f"v_fmamk_f32 v{T}, v{step}, {f32bits(float(r)):#x}, v{ang0}")
                src = T
            a(f"""
            v_cos_f32 v{T + 1}, v{src}
            v_sin_f32 v{T + 2}, v{src}
            v_cvt_pk_bf16_f32 v{R + r}, v{T + 1}, v{T + 2}
            v_cvt_pk_bf16_f32 v{I + r}, -v{T + 2}, v{T + 1}
            """)
    a(f"""
    s_mov_b32 s44, 0x80008000
    v_and_b32 v4, 1, v9
    v_cmp_eq_u32 vcc, 1, v4
    v_mul_lo_u32 v14, v4, s44
    v_bfe_u32 v4, v9, 1, 1
    v_mul_lo_u32 v15, v4, s44
    v_xor_b32 v4, v14, v15
    """)
    for r in range(4):
        a(f"""
        v_cndmask_b32 v{T}, v{M1R + r}, v{M1I + r}, vcc
        v_cndmask_b32 v{T + 1}, v{M1I + r}, v{M1R + r}, vcc
        v_xor_b32 v{M1R + 4 + r}, v15, v{T}
        v_xor_b32 v{M1I + 4 + r}, v4, v{T + 1}
        v_xor_b32 v{M1R + 8 + r}, v14, v{M1R + r}
        v_xor_b32 v{M1I + 8 + r}, v14, v{M1I + r}
        v_xor_b32 v{M1R + 12 + r}, v14, v{M1R + 4 + r}
        v_xor_b32 v{M1I + 12 + r}, v14, v{M1I + 4 + r}
        """)
    for ri in range(2):
        for r in range(4):
            b = m2(0, 0, ri) + r
            a(f"v_xor_b32 v{m2(0, 1, ri) + r}, v14, v{b}")
            if r & 1:
                a(f"v_xor_b32 v{m2(1, 0, ri) + r}, s44, v{b}")
                a(f"v_xor_b32 v{m2(1, 1, ri) + r}, s44, v{m2(0, 1, ri) + r}")
            else:
                a(f"v_mov_b32 v{m2(1, 0, ri) + r}, v{b}")
                a(f"v_mov_b32 v{m2(1, 1, ri) + r}, v{m2(0, 1, ri) + r}")
    a(f"v_mul_f32 v10, {f32bits(1 / 32):#x}, v10\n v_mul_f32 v12, {f32bits(1 / 32):#x}, v12")
    for t in range(2):
        for r in range(4):
            a(f"""
            v_fmamk_f32 v{T}, v10, {f32bits(float(16 * t + r)):#x}, v12
            v_cos_f32 v{TWC + 4 * t + r}, v{T}
            v_sin_f32 v{TWS + 4 * t + r}, v{T}
            """)
    a(f"""
    s_lshl_b32 s41, s48, 10
    v_add_u32 v10, s41, v6
    s_lshl_b32 s41, s46, 13
    v_add_u32 v11, s41, v6
    v_lshrrev_b32 v12, 4, v1
    v_mul_u32_u24 v13, {4 * 272}, v12
    v_lshl_add_u32 v13, v9, 2, v13
    s_mul_i32 s41, s46, {LSZ}
    s_add_u32 s41, s41, {LB}
    v_add_u32 v13, s41, v13
    v_mul_u32_u24 v7, 272, v8
    v_lshl_add_u32 v7, v12, 4, v7
    s_mul_i32 s41, s46, {16 * 272}
    s_add_u32 s41, s41, {LB}
    v_add_u32 v7, s41, v7
    s_cmp_eq_u32 s2, 0
    s_cselect_b32 s45, 0xffff, -1
    s_cselect_b32 s54, 0, {f32bits(-1 / 2048):#x}
    s_mov_b32 s55, s54
    s_mov_b32 s56, {f32bits(-1 / 2048):#x}
    s_mov_b32 s57, s56
    s_mov_b32 s58, {f32bits(1 / 2048):#x}
    s_mov_b32 s59, s58
    v_mov_b32 v4, {f32bits(EPS):#x}
    """)
    stamp(a, 2)
    a("s_waitcnt vmcnt(2)")
    stamp(a, 3)
    for q in (0, 2):
        a(f"""
        v_pk_add_f32 {vr(SS + q, 2)}, {vr(SS + q, 2)}, {vr(SS + 4 + q, 2)}
        v_pk_add_f32 {vr(SS + 8 + q, 2)}, {vr(SS + 8 + q, 2)}, {vr(SS + 12 + q, 2)}
        v_pk_add_f32 {vr(SS + 16 + q, 2)}, {vr(SS + 16 + q, 2)}, {vr(SS + 20 + q, 2)}
        v_pk_add_f32 {vr(SS + q, 2)}, {vr(SS + q, 2)}, {vr(SS + 8 + q, 2)}
        v_pk_add_f32 {vr(SS + q, 2)}, {vr(SS + q, 2)}, {vr(SS + 16 + q, 2)}
        """)
    for r in range(4):
        a(f"v_fmamk_f32 v{SS + r}, v{SS + r}, {f32bits(1 / 576):#x}, v4")
        a(f"v_rsq_f32 v{SS + r}, v{SS + r}")
    OU = SS + 4
    for r in range(4):
        for col in range(2):
            a(f"v_lshlrev_b32 v{OU + 8 * col + r}, 16, v{UO + 2 * r + col}")
            a(f"v_and_b32 v{OU + 8 * col + 4 + r}, 0xffff0000, v{UO + 2 * r + col}")
    for col in range(2):
        for q in (0, 2):
            a(f"v_pk_mul_f32 {vr(T + q, 2)}, {vr(OU + 8 * col + q, 2)}, {vr(SS + q, 2)}")
            a(f"v_pk_mul_f32 {vr(T + 4 + q, 2)}, {vr(OU + 8 * col + 4 + q, 2)}, {vr(SS + q, 2)}")
        for r in range(4):
            a(f"v_cvt_pk_bf16_f32 v{DB + 4 * col + r}, v{T + r}, v{T + 4 + r}")
            if col == 0:
                a(f"v_and_b32 v{DB + r}, s45, v{DB + r}")
        a(f"ds_write_b128 v10, {vr(DB + 4 * col, 4)} offset:{ZB + 8192 * col}")
    a("s_waitcnt lgkmcnt(0)\n s_barrier")
    stamp(a, 4)
    for w in range(4):
        for t in range(2):
            a(f"ds_read_b128 {vr(ZF + 4 * (2 * w + t), 4)}, v11 offset:{ZB + (2 * w + t) * 1024}")
    a("s_waitcnt vmcnt(0)")
    for i in range(8):
        a(f"v_lshlrev_b32 v{FR + i}, 16, v{FW + i}\n v_and_b32 v{FI + i}, 0xffff0000, v{FW + i}")
    ac = lambda x, ri: AC + 8 * x + 4 * ri
    for w in range(4):
        a(f"s_waitcnt lgkmcnt({6 - 2 * w})")
        for t in range(2):
            for ri, M in ((0, M1R), (1, M1I)):
                c = "0" if w == 0 else vr(ac(t, ri), 4)
                a(f"v_mfma_f32_16x16x32_bf16 {vr(ac(t, ri), 4)}, {vr(ZF + 4 * (2 * w + t), 4)}, {vr(M + 4 * w, 4)}, {c}")
    for t in range(2):
        cmul(a, ac(t, 0), ac(t, 1), TWC + 4 * t, TWS + 4 * t, DB + 4 * t)

    def st23():
        for k in range(2):
            for x in range(2):
                for ri in range(2):
                    c = "0" if k == 0 else vr(ac(x, ri), 4)
                    a(f"v_mfma_f32_16x16x32_bf16 {vr(ac(x, ri), 4)}, {vr(m2(x, k, ri), 4)}, {vr(DB + 4 * k, 4)}, {c}")
    st23()
    for v in range(2):
        cmul(a, ac(v, 0), ac(v, 1), FR + 4 * v, FI + 4 * v, DB + 4 * v, conj_out=True, wconj=False)
    st23()
    for t in range(2):
        cmul(a, ac(t, 0), ac(t, 1), TWC + 4 * t, TWS + 4 * t, DB + 4 * t)
        for r in range(4):
            a(f"ds_write_b32 v13, v{DB + 4 * t + r} offset:{(16 * t + r) * 272}")
    a("s_waitcnt lgkmcnt(0)\n s_barrier")
    stamp(a, 5)
    for st in range(4):
        for col in range(2):
            a(f"ds_read_b128 {vr(ZF + 4 * (2 * st + col), 4)}, v7 offset:{col * LSZ + st * 64}")
    for st in range(4):
        a(f"s_waitcnt lgkmcnt({6 - 2 * st})")
        for col in range(2):
            for ri, M in ((0, M1R), (1, M1I)):
                c = "0" if st == 0 else vr(ac(col, ri), 4)
                a(f"v_mfma_f32_16x16x32_bf16 {vr(ac(col, ri), 4)}, {vr(M + 4 * st, 4)}, {vr(ZF + 4 * (2 * st + col), 4)}, {c}")
    for col in range(2):
        sim = 54 if col == 0 else 56
        for q in (0, 2):
            a(f"v_pk_fma_f32 {vr(OU + 8 * col + q, 2)}, {vr(ac(col, 0) + q, 2)}, s[58:59], {vr(OU + 8 * col + q, 2)}")
            a(f"v_pk_fma_f32 {vr(OU + 8 * col + 4 + q, 2)}, {vr(ac(col, 1) + q, 2)}, {sr(sim, 2)}, {vr(OU + 8 * col + 4 + q, 2)}")
        for r in range(4):
            a(f"v_cvt_pk_bf16_f32 v{UO + 2 * r + col}, v{OU + 8 * col + r}, v{OU + 8 * col + 4 + r}")
    a(f"""
    buffer_store_dwordx4 {vr(UO, 4)}, v5, s[24:27], s49 offen
    buffer_store_dwordx4 {vr(UO + 4, 4)}, v5, s[24:27], s49 offen offset:16
    s_endpgm
    """)


def role_wp(a, wg0):
    vm = VM(a)
    a(f"""
    s_sub_u32 s46, s2, {wg0}
    s_lshr_b32 s41, s46, 3
    s_mul_i32 s42, s41, 11
    s_lshr_b32 s42, s42, 5
    s_mul_i32 s43, s42, 3
    s_sub_u32 s47, s41, s43
    s_lshl_b32 s42, s42, 3
    s_and_b32 s43, s46, 7
    s_add_u32 s42, s42, s43
    s_sub_u32 s41, s46, 96
    s_and_b32 s43, s41, 3
    s_add_u32 s43, s43, 32
    s_lshr_b32 s41, s41, 2
    s_cmp_ge_u32 s46, 96
    s_cselect_b32 s46, s43, s42
    s_cselect_b32 s47, s41, s47
    s_mul_i32 s48, s47, 3
    s_lshl_b32 s49, s40, 10
    s_mov_b32 s50, s40
    s_lshr_b32 s41, s40, 2
    s_and_b32 s40, s40, 3
    s_lshl_b32 s47, s47, 1
    s_add_u32 s47, s47, s41
    s_xor_b32 s41, s41, 1
    s_mul_i32 s53, s41, {RED_BYTES}
    s_lshl_b32 s41, s50, 3
    v_lshrrev_b32 v9, 3, v1
    v_add_u32 v9, s41, v9
    v_and_b32 v10, 7, v1
    s_cmp_ge_u32 s46, 27
    s_cbranch_scc1 wop_role
    """)
    a(f"""
    v_mul_u32_u24 v9, 3456, v9
    v_bfe_u32 v4, v1, 4, 1
    v_lshlrev_b32 v4, 2, v4
    v_xor_b32 v4, v4, v10
    v_lshl_add_u32 v9, v4, 4, v9
    s_lshl_b32 s41, s46, 7
    v_add_u32 v9, s41, v9
    """)
    t1_setup(a, 47, 48, True)
    t1_seeds(a, 0)
    a("s_waitcnt lgkmcnt(0)")
    srd(a, 28, 12, N * 1728 * 2)
    dma_blocks(a, vm, [9], 28, 48, 64 * 3456, 49)
    stamp(a, 1)
    t1_seeds(a, 1)
    t1_seeds(a, 2)
    srd(a, 32, 20, 72 * 2048 * 16, WP)
    a(f"""
    s_lshl_b32 s41, s40, 4
    v_bfe_u32 v11, v1, 2, 2
    v_lshl_add_u32 v11, v3, 3, v11
    v_add_u32 v11, s41, v11
    v_lshlrev_b32 v11, 7, v11
    v_bfe_u32 v4, v1, 4, 1
    v_lshl_add_u32 v11, v4, 5, v11
    v_and_b32 v4, 3, v1
    v_lshl_add_u32 v11, v4, 3, v11
    v_bfe_u32 v4, v1, 3, 1
    v_lshl_add_u32 v11, v4, 6, v11
    v_xor_b32 v12, 64, v11
    """)
    red_setup(a, "s53")
    t = GT
    a(f"""
    s_mul_i32 s41, s46, 57
    s_lshr_b32 s41, s41, 9
    s_mul_i32 s42, s41, 9
    s_sub_u32 s42, s46, s42
    s_lshl_b32 s42, s42, 6
    v_add_u32 v13, s42, v1
    v_mul_u32_u24 v4, 3641, v13
    v_lshrrev_b32 v4, 16, v4
    v_mul_u32_u24 v{t}, 18, v4
    v_sub_u32 v13, v13, v{t}
    v_and_b32 v{t}, 1, v4
    v_lshrrev_b32 v4, 1, v4
    v_bfe_u32 v{t + 1}, v13, 2, 1
    v_bfe_u32 v{t + 2}, v13, 3, 1
    v_and_b32 v{t + 3}, 3, v13
    v_lshl_add_u32 v{t + 3}, v{t + 1}, 3, v{t + 3}
    v_lshl_add_u32 v{t + 3}, v{t + 2}, 2, v{t + 3}
    s_lshl_b32 s43, s41, 4
    s_lshl_b32 s44, s41, 1
    s_cmp_lt_u32 s41, 2
    s_cselect_b64 vcc, -1, 0
    s_cselect_b32 s42, 5, 4
    s_cselect_b32 s43, s43, 64
    s_cselect_b32 s44, s44, 8
    s_add_u32 s44, s44, 80
    v_cndmask_b32 v{t + 3}, v13, v{t + 3}, vcc
    v_lshlrev_b32 v{t + 1}, s42, v{t}
    v_add3_u32 v{t + 3}, v{t + 3}, v{t + 1}, s43
    v_lshl_add_u32 v{t + 1}, v{t}, 2, v13
    v_add_u32 v{t + 1}, s44, v{t + 1}
    v_cmp_gt_u32 vcc, 16, v13
    v_cndmask_b32 v13, v{t + 1}, v{t + 3}, vcc
    v_lshl_add_u32 v13, v4, 7, v13
    s_mov_b32 s54, {L(AMP)}
    s_cmp_eq_u32 s41, 0
    s_cselect_b32 s54, {L(AMP * QSCALE)}, s54
    s_mov_b32 s55, s54
    s_mul_i32 s41, s47, 12
    s_add_u32 s41, s41, s40
    s_lshl_b32 s41, s41, 11
    v_add_u32 v13, s41, v13
    v_lshlrev_b32 v13, 4, v13
    s_or_b32 s41, s47, s40
    v_or_b32 v4, s41, v3
    v_cmp_eq_u32 vcc, 0, v4
    v_mov_b32 v14, -1
    v_mov_b32 v4, 0xffff
    v_cndmask_b32 v14, v14, v4, vcc
    """)
    core(a, vm, 1, True, False)
    a("s_barrier")
    reduce(a)
    blk_epilogue(a, 13, 32, 4 * 2048 * 16, scale="s[54:55]", dcmask=14)
    vm = VM(a)
    a(f"""
    wop_role:
    s_sub_u32 s46, s46, 27
    s_lshl_b32 s41, s46, 6
    v_add_u32 v9, s41, v9
    """)
    c2row(a, 9, 4, 13)
    a(f"""
    v_mul_u32_u24 v9, 1152, v9
    s_and_b32 s41, s50, 1
    s_lshl_b32 s41, s41, 2
    v_lshrrev_b32 v4, 4, v1
    v_xor_b32 v4, v4, v10
    v_xor_b32 v4, s41, v4
    v_lshl_add_u32 v9, v4, 4, v9
    """)
    t1_setup(a, 47, 48, False)
    t1_seeds(a, 0)
    a("s_waitcnt lgkmcnt(0)")
    srd(a, 28, 14, N * N * 2)
    dma_blocks(a, vm, [9], 28, 48, 128, 49)
    stamp(a, 1)
    t1_seeds(a, 1)
    t1_seeds(a, 2)
    srd(a, 32, 20, TABB, WOP)
    rows_read_addr(a, True)
    red_setup(a, "s53")
    a(f"""
    s_lshl_b32 s41, s46, 3
    s_add_u32 s41, s41, s40
    s_mul_i32 s41, s41, 576
    s_mul_i32 s42, s47, 96
    s_add_u32 s41, s41, s42
    v_mul_u32_u24 v13, {4 * 576}, v3
    v_add3_u32 v13, v13, v2, s41
    v_lshlrev_b32 v13, 4, v13
    s_mov_b32 s54, {L(AMP)}
    s_mov_b32 s55, s54
    """)
    core(a, vm, 1, False, True)
    a("s_barrier")
    reduce(a)
    blk_epilogue(a, 13, 32, 512, scale="s[54:55]")


def kernels():
    a = A()
    a("s_mov_b32 s3, 252\n fft_body:")
    prologue(a, "s3", "fft")
    a("s_cmp_ge_u32 s2, 144\n s_cbranch_scc1 fft_r1")
    role_fft(a)
    a("fft_r1:\n s_cmp_eq_u32 s3, 252\n s_cbranch_scc0 fft_r2")
    role_wp(a, 144)
    a("fft_r2:")
    k_gemm.role_wot(a, "wot", 144)
    a("fft_exit:\n s_endpgm")
    b = A()
    b("s_mov_b32 s3, 185\n s_branch fft_body")
    return [("p1_kernel", a.text(), 256), ("p5_kernel", b.text(), 256)]


def launch(i):
    if i == 1:
        return ("p1_kernel", 252, 512, 2 * RED_BYTES)
    return ("p5_kernel", 185, 512, FFT_LDS)
```

```python
from common import *
from k_gen import *

TABB = 72 * 576 * 16
GEMM_LDS = RED_BYTES + 1024


def tile_ids(a, wgreg="s2"):
    a(f"""
    s_and_b32 s46, {wgreg}, 7
    s_lshl_b32 s46, s46, 2
    s_bfe_u32 s41, {wgreg}, 0x20003
    s_add_u32 s46, s46, s41
    s_lshr_b32 s47, {wgreg}, 5
    """)


def xor_row(a, dst):
    a(f"s_lshl_b32 s41, s40, 3\n v_xor_b32 v{dst}, s41, v2")


def s_of_p_rows(a, dst, tmp):
    a(f"""
    s_lshr_b32 s41, s46, 3
    s_lshl_b32 s41, s41, 9
    s_and_b32 s42, s46, 3
    s_lshl_b32 s42, s42, 7
    s_add_u32 s41, s41, s42
    s_bfe_u32 s42, s46, 0x10002
    s_lshl_b32 s42, s42, 4
    s_add_u32 s41, s41, s42
    v_and_b32 v{tmp}, 3, v2
    v_lshlrev_b32 v{tmp}, 5, v{tmp}
    v_lshrrev_b32 v{dst}, 2, v2
    v_add3_u32 v{dst}, v{dst}, v{tmp}, s41
    """)


def u_addr(a, dst):
    a(f"""
    s_mul_i32 s41, s47, {24 * 16384}
    s_lshl_b32 s42, s40, 15
    s_add_u32 s41, s41, s42
    s_lshl_b32 s42, s46, 9
    s_add_u32 s41, s41, s42
    v_lshlrev_b32 v{dst}, 14, v3
    v_lshl_add_u32 v{dst}, v2, 3, v{dst}
    v_add_u32 v{dst}, s41, v{dst}
    """)


def u_epilogue(a, name, vaddr, srdU, srdS, old=None, scale=None, ssqb=RED_BYTES):
    P = RING0 + 80
    T = RING0 + 92
    a(f"""
    s_or_b32 s41, s47, s40
    v_or_b32 v4, s41, v3
    v_cmp_eq_u32 vcc, 0, v4
    v_mov_b32 v4, -1
    v_mov_b32 v{T}, 0xffff
    v_cndmask_b32 v4, v4, v{T}, vcc
    v_mov_b32 v{T + 2}, 0
    v_mov_b32 v{T + 3}, 0
    """)
    for tt in range(6):
        ta, tb = tt >> 1, tt & 1
        acc = ACC0 + 16 * tt
        if old is not None:
            o = old + 2 * tt
            a(f"""
            v_lshlrev_b32 v{T + 4}, 16, v{o}
            v_and_b32 v{T + 5}, 0xffff0000, v{o}
            v_lshlrev_b32 v{T + 6}, 16, v{o + 1}
            v_and_b32 v{T + 7}, 0xffff0000, v{o + 1}
            v_pk_add_f32 {vr(acc, 2)}, {vr(acc, 2)}, {vr(T + 4, 2)}
            v_pk_add_f32 {vr(acc + 2, 2)}, {vr(acc + 2, 2)}, {vr(T + 6, 2)}
            """)
        if scale is not None:
            a(f"v_pk_mul_f32 {vr(acc, 2)}, {vr(acc, 2)}, {scale}\n v_pk_mul_f32 {vr(acc + 2, 2)}, {vr(acc + 2, 2)}, {scale}")
        p = P + 2 * tt
        a(f"""
        v_cvt_pk_bf16_f32 v{p}, v{acc}, v{acc + 1}
        v_cvt_pk_bf16_f32 v{p + 1}, v{acc + 2}, v{acc + 3}
        s_mov_b32 s42, {ta * 131072}
        buffer_store_dwordx2 {vr(p, 2)}, v{vaddr}, {sr(srdU, 4)}, s42 offen offset:{tb * 256}
        """)
        if ta == 0:
            a(f"v_and_b32 v{T + 1}, v4, v{p}\n v_dot2_f32_bf16 v{T + 2 + tb}, v{T + 1}, v{T + 1}, v{T + 2 + tb}")
        else:
            a(f"v_dot2_f32_bf16 v{T + 2 + tb}, v{p}, v{p}, v{T + 2 + tb}")
        a(f"v_dot2_f32_bf16 v{T + 2 + tb}, v{p + 1}, v{p + 1}, v{T + 2 + tb}")
    a(f"""
    v_permlane32_swap_b32 v{T + 2}, v{T + 3}
    v_lshlrev_b32 v4, 2, v0
    v_add_u32 v5, {ssqb}, v4
    v_add_f32 v{T + 2}, v{T + 2}, v{T + 3}
    ds_write_b32 v5, v{T + 2}
    s_waitcnt lgkmcnt(0)
    s_barrier
    s_cmp_lg_u32 s40, 0
    s_cbranch_scc1 {name}_done
    ds_read_b32 v{T + 4}, v5 offset:256
    ds_read_b32 v{T + 5}, v5 offset:512
    ds_read_b32 v{T + 6}, v5 offset:768
    s_lshl_b32 s41, s47, 13
    s_lshl_b32 s42, s46, 8
    s_add_u32 s41, s41, s42
    s_waitcnt lgkmcnt(0)
    v_add_f32 v{T + 2}, v{T + 2}, v{T + 4}
    v_add_f32 v{T + 5}, v{T + 5}, v{T + 6}
    v_add_f32 v{T + 2}, v{T + 2}, v{T + 5}
    buffer_store_dword v{T + 2}, v4, {sr(srdS, 4)}, s41 offen
    {name}_done:
    s_endpgm
    """)


def blk_epilogue(a, vaddr, srdO, ta_stride, scale=None, dcmask=None):
    P = RING0 + 80
    for ta in range(3):
        p = P + 4 * ta
        for tb in range(2):
            acc = ACC0 + 16 * (2 * ta + tb)
            if scale is not None:
                a(f"v_pk_mul_f32 {vr(acc, 2)}, {vr(acc, 2)}, {scale}\n v_pk_mul_f32 {vr(acc + 2, 2)}, {vr(acc + 2, 2)}, {scale}")
            a(f"v_cvt_pk_bf16_f32 v{p + 2 * tb}, v{acc}, v{acc + 1}\n v_cvt_pk_bf16_f32 v{p + 2 * tb + 1}, v{acc + 2}, v{acc + 3}")
            if dcmask is not None and ta == 0:
                a(f"v_and_b32 v{p + 2 * tb}, v{dcmask}, v{p + 2 * tb}")
        a(f"""
        v_permlane32_swap_b32 v{p}, v{p + 2}
        v_permlane32_swap_b32 v{p + 1}, v{p + 3}
        s_mov_b32 s42, {ta * ta_stride}
        buffer_store_dwordx4 {vr(p, 4)}, v{vaddr}, {sr(srdO, 4)}, s42 offen
        """)
    a("s_endpgm")


def t1_a_addr(a, dst, rowbase_sreg):
    xor_row(a, dst)
    a(f"""
    v_mul_u32_u24 v4, 576, v3
    v_add3_u32 v{dst}, v{dst}, v4, s{rowbase_sreg}
    v_lshlrev_b32 v{dst}, 4, v{dst}
    """)


def role_u0(a, name):
    vm = VM(a)
    tile_ids(a)
    a(f"""
    s_mul_i32 s48, s47, 3
    s_lshr_b32 s48, s48, 1
    s_lshr_b32 s41, s46, 3
    s_lshl_b32 s41, s41, 9
    s_and_b32 s42, s46, 3
    s_lshl_b32 s42, s42, 7
    s_add_u32 s41, s41, s42
    s_bfe_u32 s42, s46, 0x10002
    s_lshl_b32 s42, s42, 4
    s_add_u32 s41, s41, s42
    s_lshl_b32 s42, s40, 2
    s_add_u32 s41, s41, s42
    v_bfe_u32 v9, v1, 3, 2
    v_lshlrev_b32 v9, 5, v9
    v_add3_u32 v9, v9, v3, s41
    v_mul_u32_u24 v9, 1152, v9
    v_lshrrev_b32 v4, 4, v1
    v_and_b32 v10, 7, v1
    v_xor_b32 v4, v4, v10
    v_lshl_add_u32 v9, v4, 4, v9
    v_xor_b32 v10, 64, v9
    v_add_u32 v10, {2 * 1152 - 1024}, v10
    s_lshl_b32 s49, s40, 11
    """)
    t1_setup(a, 47, 48, True)
    t1_seeds(a, 0)
    t1_seeds(a, 1)
    a("s_waitcnt lgkmcnt(0)")
    srd(a, 28, 4, S * N * 2)
    dma_blocks(a, vm, [9, 10], 28, 48, 128, 49)
    stamp(a, 1)
    t1_seeds(a, 2)
    srd(a, 32, 20, 144 * 16384, UB)
    srd(a, 36, 20, 6 * 8192, SSP)
    rows_read_addr(a, False)
    red_setup(a, DATA_BYTES)
    u_addr(a, 12)
    a(f"s_mov_b32 s52, {L(AMP)}\n s_mov_b32 s53, s52")
    core(a, vm, 2, False, False)
    reduce(a)
    u_epilogue(a, name, 12, 32, 36, scale="s[52:53]", ssqb=DATA_BYTES + RED_BYTES)


def c2row(a, dst, tmp, tmp2):
    a(f"""
    v_lshrrev_b32 v{tmp}, 4, v{dst}
    v_lshl_add_u32 v{tmp}, v{tmp}, 1, v{dst}
    v_subrev_u32 v{tmp2}, 512, v{dst}
    v_cmp_gt_u32 vcc, 512, v{dst}
    v_and_b32 v{dst}, 1, v{tmp2}
    v_lshrrev_b32 v{tmp2}, 1, v{tmp2}
    v_mul_u32_u24 v{tmp2}, 18, v{tmp2}
    v_add3_u32 v{dst}, v{dst}, v{tmp2}, 16
    v_cndmask_b32 v{dst}, v{dst}, v{tmp}, vcc
    """)


def role_filter(a, name, wg0):
    a(f"""
    s_sub_u32 s46, s2, {wg0}
    s_lshr_b32 s41, s46, 3
    s_lshl_b32 s41, s41, 2
    s_add_u32 s41, s41, s40
    s_lshl_b32 s41, s41, 6
    s_and_b32 s42, s46, 7
    s_lshl_b32 s42, s42, 3
    s_add_u32 s41, s41, s42
    s_mul_i32 s48, s41, 578
    s_add_u32 s49, s48, 4096
    s_mul_i32 s50, s40, 10240
    v_lshlrev_b32 v5, 4, v1
    v_and_b32 v6, 7, v1
    v_lshrrev_b32 v7, 3, v1
    s_mul_i32 s41, s40, 72
    v_lshl_add_u32 v8, v7, 3, s41
    s_add_u32 s41, s41, 64
    v_add_u32 v9, s41, v7
    v_mul_u32_u24 v10, 578, v6
    v_lshl_add_u32 v11, v8, 1, v10
    v_lshl_add_u32 v12, v9, 1, v10
    v_add_u32 v10, 576, v10
    v_cmp_eq_u32 vcc, 0, v8
    v_cndmask_b32 v10, v11, v10, vcc
    s_lshr_b32 s41, s46, 5
    s_lshl_b32 s41, s41, 12
    s_bfe_u32 s42, s46, 0x20001
    s_lshl_b32 s42, s42, 10
    s_add_u32 s41, s41, s42
    s_bfe_u32 s42, s46, 0x20003
    s_lshl_b32 s42, s42, 8
    s_add_u32 s41, s41, s42
    s_and_b32 s42, s46, 1
    s_lshl_b32 s42, s42, 7
    s_add_u32 s41, s41, s42
    v_lshl_add_u32 v6, v6, 4, s41
    v_lshl_add_u32 v8, v8, 13, v6
    v_lshl_add_u32 v9, v9, 13, v6
    s_waitcnt lgkmcnt(0)
    """)
    srd(a, 24, 6, S * 289 * 2)
    srd(a, 28, 8, S * 289 * 2)
    for arr in range(2):
        a(f"s_add_u32 m0, s50, {arr * 5120}")
        for q in range(4):
            a(f"buffer_load_dwordx4 v5, {sr(24 + 4 * arr, 4)}, s48 offen offset:{q * 1024} lds")
        a(f"s_add_u32 m0, s50, {arr * 5120 + 4096}")
        a(f"buffer_load_dwordx4 v5, {sr(24 + 4 * arr, 4)}, s49 offen lds")
    stamp(a, 1)
    srd(a, 32, 20, 288 * 8192, WT)
    a("s_waitcnt vmcnt(0)\n s_barrier")
    stamp(a, 2)

    def rd(t):
        b = 16 + 8 * t
        va, o = (10, 0) if t == 0 else ((11, 2 * t) if t < 8 else (12, 0))
        for r in range(4):
            for arr in range(2):
                a(f"ds_read_u16 v{b + 4 * arr + r}, v{va} offset:{(2 * r + arr) * 5120 + o}")
    rd(0)
    for t in range(9):
        if t < 8:
            rd(t + 1)
        a(f"s_waitcnt lgkmcnt({8 if t < 8 else 0})")
        b = 16 + 8 * t
        for r in range(4):
            a(f"v_lshl_or_b32 v{b + r}, v{b + 4 + r}, 16, v{b + r}")
        if t < 8:
            a(f"s_mov_b32 s42, {t * 8192}\n buffer_store_dwordx4 {vr(b, 4)}, v8, s[32:35], s42 offen")
        else:
            a(f"buffer_store_dwordx4 {vr(b, 4)}, v9, s[32:35], 0 offen")
    a("s_endpgm")


def role_wot(a, name, wg0):
    a(f"""
    s_sub_u32 s46, s2, {wg0}
    s_lshl_b32 s46, s46, 4
    s_lshl_b32 s41, s40, 1
    s_add_u32 s46, s46, s41
    v_add_u32 v5, s46, v3
    v_mul_u32_u24 v6, 7282, v5
    v_lshrrev_b32 v6, 16, v6
    v_mul_u32_u24 v7, 9, v6
    v_sub_u32 v5, v5, v7
    v_lshl_add_u32 v5, v5, 5, v2
    v_lshlrev_b32 v7, 3, v6
    """)
    c2row(a, 7, 8, 9)
    a(f"""
    v_mov_b32 v8, {18 * 1152}
    v_mov_b32 v9, 2304
    v_cndmask_b32 v8, v8, v9, vcc
    v_mul_u32_u24 v7, 1152, v7
    v_lshl_add_u32 v10, v5, 2, v7
    v_add_u32 v11, v10, v8
    v_add_u32 v12, v11, v8
    v_add_u32 v13, v12, v8
    v_mul_u32_u24 v6, {576 * 16}, v6
    v_lshl_add_u32 v5, v5, 5, v6
    s_mov_b32 s44, 0x05040100
    s_mov_b32 s45, 0x07060302
    s_waitcnt lgkmcnt(0)
    """)
    srd(a, 24, 14, N * N * 2)
    srd(a, 32, 20, TABB, WOT)
    for i in range(8):
        a(f"buffer_load_dword v{16 + i}, v{10 + (i >> 1)}, s[24:27], 0 offen offset:{1152 * (i & 1)}")
    a("s_waitcnt vmcnt(0)")
    for q in range(4):
        a(f"v_perm_b32 v{24 + q}, v{16 + 2 * q + 1}, v{16 + 2 * q}, s44")
        a(f"v_perm_b32 v{28 + q}, v{16 + 2 * q + 1}, v{16 + 2 * q}, s45")
    a("""
    buffer_store_dwordx4 v[24:27], v5, s[32:35], 0 offen
    buffer_store_dwordx4 v[28:31], v5, s[32:35], 0 offen offset:16
    s_endpgm
    """)


P0_GRID = 256
P0_LDS = DATA_BYTES + RED_BYTES + 1024


def k_p0():
    a = A()
    n = "p0"
    prologue(a, P0_GRID, n)
    a(f"""
    s_cmp_ge_u32 s2, 192
    s_cbranch_scc1 {n}_r1
    """)
    role_u0(a, n + "a")
    a(f"{n}_r1:")
    role_filter(a, n + "d", 192)
    a(f"{n}_exit:\n s_endpgm")
    return a.text()


def o_steps(a, vm, vA, srdA, vB, srdB, vX, srdX):
    steps = []
    for i in range(9):
        def issue(base, i=i):
            if i < 8:
                a(f"s_add_u32 s42, s50, {i * 65536}")
                for tb in range(2):
                    a(f"buffer_load_dwordx4 {vr(base + 12 + 4 * tb, 4)}, v{vB}, {sr(srdB, 4)}, s42 offen offset:{512 * tb}")
                    vm.issue()
                sreg, imm = 43, i * 18432
            else:
                for d in range(4):
                    a(f"s_add_u32 s42, s51, {d * 8192}")
                    for tb in range(2):
                        a(f"buffer_load_dword v{base + 12 + 4 * tb + d}, v{vX}, {sr(srdX, 4)}, s42 offen offset:{128 * tb}")
                        vm.issue()
                sreg, imm = 49, 0
            if isinstance(vA, int):
                ld_blk(a, vm, base, 3, vA, srdA, sreg, imm)
            else:
                ld_blk(a, vm, base, 3, vA[0], srdA, sreg, imm, tile_stride=vA[1])
        steps.append(dict(issue=issue))
    return steps


def o_setup(a, vB, vX):
    a(f"""
    s_mul_i32 s43, s40, {8 * 18432}
    s_add_u32 s49, s40, 32
    s_mul_i32 s49, s49, 18432
    s_lshl_b32 s50, s40, 19
    s_lshl_b32 s51, s40, 16
    s_lshl_b32 s41, s46, 6
    v_add_u32 v4, s41, v2
    v_lshl_add_u32 v{vB}, v3, 11, v4
    v_lshlrev_b32 v{vB}, 4, v{vB}
    v_lshl_add_u32 v{vX}, v3, 13, v4
    v_lshlrev_b32 v{vX}, 2, v{vX}
    """)


def k_p4():
    a = A()
    n = "p4"
    vm = VM(a)
    prologue(a, 192, n)
    tile_ids(a)
    a("s_mul_i32 s48, s47, 96")
    t1_a_addr(a, 9, 48)
    o_setup(a, 10, 11)
    u_addr(a, 12)
    a("s_waitcnt lgkmcnt(0)")
    srd(a, 24, 20, TABB, WOP)
    srd(a, 28, 20, 64 * 32768, OB)
    srd(a, 52, 20, 32 * 8192, OX)
    srd(a, 32, 20, 144 * 16384, UB)
    srd(a, 36, 20, 6 * 8192, SSP)
    OLD = RING0 + 120

    def oldU():
        for tt in range(6):
            a(f"s_mov_b32 s42, {(tt >> 1) * 131072}")
            a(f"buffer_load_dwordx2 {vr(OLD + 2 * tt, 2)}, v12, s[32:35], s42 offen offset:{(tt & 1) * 256}")
            vm.issue()
    gemm(a, vm, o_steps(a, vm, 9, 24, 10, 28, 11, 52), 6, after_initial=oldU)
    u_epilogue(a, n, 12, 32, 36, old=OLD)
    a(f"{n}_exit:\n s_endpgm")
    return a.text()


def k_p8():
    a = A()
    n = "p8"
    vm = VM(a)
    prologue(a, 192, n)
    tile_ids(a)
    xor_row(a, 9)
    a(f"""
    s_mul_i32 s48, s47, 96
    v_lshrrev_b32 v4, 2, v9
    v_mul_u32_u24 v4, 12, v4
    v_and_b32 v9, 3, v9
    v_add3_u32 v9, v9, v4, s48
    v_mul_u32_u24 v4, 576, v3
    v_add_u32 v9, v9, v4
    v_lshlrev_b32 v9, 4, v9
    """)
    o_setup(a, 10, 11)
    a(f"""
    v_lshl_add_u32 v12, v3, 12, v4
    v_lshlrev_b32 v12, 3, v12
    v_add_u32 v13, 16384, v12
    s_mul_i32 s56, s40, {9 * 65536}
    s_mul_i32 s57, s40, {9 * 18432}
    """)
    srd_tab(a, 60, "T2", TABB)
    s_of_p_rows(a, 14, 4)
    a(f"""
    s_mul_i32 s41, s47, 192
    s_mul_i32 s42, s40, 48
    s_add_u32 s41, s41, s42
    v_mul_u32_u24 v14, 1152, v14
    v_mul_u32_u24 v4, 24, v3
    v_add3_u32 v14, v14, v4, s41
    s_waitcnt lgkmcnt(0)
    """)
    srd(a, 24, 20, TABB, WOT)
    srd(a, 28, 20, 64 * 32768, OB)
    srd(a, 52, 20, 32 * 8192, OX)
    srd(a, 32, 20, 144 * 16384, UB)
    srd(a, 36, 16, S * N * 2)
    steps = []
    for i in range(9):
        def issue(base, i=i):
            a(f"s_add_u32 s42, s56, {i * 65536}")
            for tb in range(2):
                for q in range(2):
                    a(f"buffer_load_dwordx2 {vr(base + 12 + 4 * tb + 2 * q, 2)}, v{12 + q}, s[32:35], s42 offen offset:{256 * tb}")
                    vm.issue()
            ld_blk(a, vm, base, 3, 9, 60, 57, i * 18432, tile_stride=64)
        steps.append(dict(issue=issue))
    steps += o_steps(a, vm, (9, 64), 24, 10, 28, 11, 52)
    gemm(a, vm, steps, 7)
    P = RING0 + 80
    for tb in range(2):
        p = P + 8 * tb
        for ta in range(3):
            acc = ACC0 + 16 * (2 * ta + tb)
            a(f"v_cvt_pk_bf16_f32 v{p + 2 * ta}, v{acc}, v{acc + 1}\n v_cvt_pk_bf16_f32 v{p + 2 * ta + 1}, v{acc + 2}, v{acc + 3}")
        a(f"""
        s_mov_b32 s42, {9216 * tb}
        buffer_store_dwordx4 {vr(p, 4)}, v14, s[36:39], s42 offen
        buffer_store_dwordx2 {vr(p + 4, 2)}, v14, s[36:39], s42 offen offset:16
        """)
    a(f"{n}_exit:\n s_endpgm")
    return a.text()
```

```python
from common import *

BF = 112
XS = 128
GF = 176
CC = 188
GT = 192
AMP = (2.0 / N) ** 0.5
DATA_BYTES = 9 * 8192


def L(x):
    return f"{f32bits(x):#x}"


def cvt_frag(a, ta, slot):
    x = XS + 16 * ta + 8 * slot
    for q in range(4):
        a(f"v_cvt_pk_bf16_f32 v{GF + 4 * ta + q}, v{x + 2 * q}, v{x + 2 * q + 1}")


def seeds_t1(a, ta, vf, vph, vd0):
    x0, x1 = XS + 16 * ta, XS + 16 * ta + 8
    t = GT
    a(f"""
    v_mul_f32 v{t}, v{vf}, v{vd0}
    v_mul_f32 v{t + 2}, {L(1 / 9)}, v{vf}
    v_mul_f32 v{t + 1}, {L(1 / 576)}, v{t}
    v_rndne_f32 v{t + 2}, v{t + 2}
    v_rndne_f32 v{t + 1}, v{t + 1}
    v_fmamk_f32 v{t + 2}, v{t + 2}, {L(-9.0)}, v{vf}
    v_fmamk_f32 v{t}, v{t + 1}, {L(-576.0)}, v{t}
    v_mul_f32 v{t + 2}, {L(1 / 9)}, v{t + 2}
    v_fmamk_f32 v{x0}, v{t}, {L(1 / 576)}, v{vph}
    v_mul_f32 v{t + 1}, {L(1 / 576)}, v{vf}
    v_cos_f32 v{CC + ta}, v{t + 2}
    v_add_f32 v{x1}, v{x0}, v{t + 2}
    """)
    for e in range(1, 8):
        a(f"v_fmamk_f32 v{x0 + e}, v{t + 1}, {L(float(e))}, v{x0}")
    for e in range(1, 8):
        a(f"v_fmamk_f32 v{x1 + e}, v{t + 1}, {L(float(e))}, v{x1}")
    a(f"v_add_f32 v{CC + ta}, v{CC + ta}, v{CC + ta}")
    for e in range(16):
        a(f"v_cos_f32 v{x0 + e}, v{x0 + e}")
    cvt_frag(a, ta, 0)


def t1_setup(a, jt_sreg, rot_sreg, xor):
    t = GT
    if xor:
        a(f"s_lshl_b32 s41, s40, 3\n v_xor_b32 v4, s41, v2")
    else:
        a("v_mov_b32 v4, v2")
    a(f"""
    s_mul_i32 s41, s{jt_sreg}, 96
    v_add_u32 v4, s41, v4
    s_lshl_b32 s41, s{rot_sreg}, 6
    s_lshl_b32 s42, s40, 4
    s_add_u32 s41, s41, s42
    v_lshl_add_u32 v{t + 7}, v3, 3, s41
    v_cvt_f32_u32 v{t + 7}, v{t + 7}
    v_lshrrev_b32 v{t + 4}, 1, v4
    v_cvt_f32_u32 v{t + 4}, v{t + 4}
    v_and_b32 v{t + 6}, 1, v4
    v_cvt_f32_u32 v{t + 6}, v{t + 6}
    v_mul_f32 v{t + 6}, {L(0.25)}, v{t + 6}
    v_mov_b32 v{t}, {L(288.0)}
    v_mov_b32 v{t + 1}, {L(0.125)}
    v_cmp_eq_u32 vcc, 0, v4
    v_cndmask_b32 v{t + 3}, v{t + 4}, v{t}, vcc
    v_cmp_gt_u32 vcc, 2, v4
    v_cndmask_b32 v{t + 5}, v{t + 6}, v{t + 1}, vcc
    """)


def t1_seeds(a, ta):
    t = GT
    if ta == 0:
        seeds_t1(a, 0, t + 3, t + 5, t + 7)
    else:
        a(f"v_add_f32 v{t + 4}, {L(16.0)}, v{t + 4}")
        seeds_t1(a, ta, t + 4, t + 6, t + 7)


def dma_blocks(a, vm, vaddrs, srdn, rot_sreg, bs, m0base_sreg):
    a(f"s_mul_i32 s42, s{rot_sreg}, {bs}\n s_mov_b32 m0, s{m0base_sreg}")
    for n in range(9):
        for kk, v in enumerate(vaddrs):
            a(f"buffer_load_dwordx4 v{v}, {sr(srdn, 4)}, s42 offen offset:{1024 * kk} lds")
            vm.issue()
        if n < 8:
            a(f"""
            s_add_u32 s42, s42, {bs}
            s_add_u32 m0, m0, 8192
            s_cmp_eq_u32 s42, {9 * bs}
            s_cselect_b32 s42, 0, s42
            """)


def red_setup(a, ldsbase):
    a(f"v_lshlrev_b32 v8, 4, v1\n v_add_u32 v8, {ldsbase}, v8")
    for ap in (1, 2, 3):
        a(f"s_xor_b32 s41, s40, {ap}\n s_mul_i32 s41, s41, {3 * 6144}\n s_add_u32 s41, s41, {(ap - 1) * 6144}\n v_add_u32 v{4 + ap}, s41, v8")
    a(f"s_mul_i32 s41, s40, {3 * 6144}\n v_add_u32 v8, s41, v8")


def reduce(a):
    stamp(a, 3)
    for tt in range(6):
        for ap in (1, 2, 3):
            a(f"ds_write_b128 v{4 + ap}, {vr(ACC0 + 16 * tt + 4 * ap, 4)} offset:{tt * 1024}")
    a("s_waitcnt lgkmcnt(0)\n s_barrier")
    stamp(a, 4)
    R = RING0
    for tt in range(6):
        for sl in range(3):
            a(f"ds_read_b128 {vr(R + 12 * tt + 4 * sl, 4)}, v8 offset:{sl * 6144 + tt * 1024}")
    for tt in range(6):
        a(f"s_waitcnt lgkmcnt({min(15, 3 * (5 - tt))})")
        acc = ACC0 + 16 * tt
        r = R + 12 * tt
        for q in (0, 2):
            a(f"v_pk_add_f32 {vr(r + q, 2)}, {vr(r + q, 2)}, {vr(r + 4 + q, 2)}")
            a(f"v_pk_add_f32 {vr(acc + q, 2)}, {vr(acc + q, 2)}, {vr(r + 8 + q, 2)}")
        for q in (0, 2):
            a(f"v_pk_add_f32 {vr(acc + q, 2)}, {vr(acc + q, 2)}, {vr(r + q, 2)}")


def gen_step(a, n, bfrag, swap, first, extra=None):
    for ta in range(3):
        for tb in range(2):
            acc = ACC0 + 16 * (2 * ta + tb)
            c = "0" if first else vr(acc, 16)
            G, D = vr(GF + 4 * ta, 4), bfrag(tb)
            if swap:
                G, D = D, G
            a(f"v_mfma_f32_32x32x16_bf16 {vr(acc, 16)}, {G}, {D}, {c}")
            if tb == 0:
                if ta > 0 and n + 1 <= 8:
                    cvt_frag(a, ta - 1, (n + 1) & 1)
                if ta == 0 and n >= 1:
                    cvt_frag(a, 2, n & 1)
            if 1 <= n <= 7:
                xn, xo = XS + 16 * ta + 8 * (n & 1), XS + 16 * ta + 8 * ((n + 1) & 1)
                for e in (range(0, 2) if tb == 0 else range(2, 8)):
                    a(f"v_fma_f32 v{xo + e}, v{CC + ta}, v{xn + e}, -v{xo + e}")
            if extra and extra[2 * ta + tb]:
                extra[2 * ta + tb]()


def core(a, vm, nper, tr, swap, syncs=(0, 2, 5)):
    def reads(n):
        if n == 8:
            a("v_add_u32 v11, 0x10000, v11")
            if tr:
                a("v_add_u32 v12, 0x10000, v12")
        o = (n & 7) * 8192
        b = BF + 8 * (n & 1)
        for tb in range(2):
            if tr:
                for q in range(2):
                    a(f"ds_read_b64_tr_b16 {vr(b + 4 * tb + 2 * q, 2)}, v{11 + tb} offset:{o + 512 * q}")
            else:
                a(f"ds_read_b128 {vr(b + 4 * tb, 4)}, v11 offset:{o + 4096 * tb}")
        return 4 if tr else 2

    def sync(n):
        if n in syncs:
            nxt = min([s for s in syncs if s > n] + [9])
            a(f"s_waitcnt vmcnt({nper * (9 - nxt)})\n s_barrier")
    sync(0)
    stamp(a, 2)
    reads(0)
    for n in range(9):
        if n < 8:
            sync(n + 1)
            k = reads(n + 1)
            a(f"s_waitcnt lgkmcnt({k})")
        else:
            a("s_waitcnt lgkmcnt(0)")
        gen_step(a, n, lambda tb: vr(BF + 8 * (n & 1) + 4 * tb, 4), swap, n == 0)


def rows_read_addr(a, xor, base=None):
    if xor:
        a("s_lshl_b32 s41, s40, 3\n v_xor_b32 v11, s41, v2")
    else:
        a("v_mov_b32 v11, v2")
    a("""
    s_lshl_b32 s41, s40, 1
    v_bfe_u32 v4, v11, 1, 3
    v_xor_b32 v4, s41, v4
    v_xor_b32 v4, v3, v4
    v_lshlrev_b32 v11, 7, v11
    v_lshl_add_u32 v11, v4, 4, v11
    """)
```

```python
from common import *

SLOT = 32768
NSL = 5
QKV_LDS = NSL * SLOT
AC = 16
FRG = 80
T = 112


def dma(a, c):
    sl = (c % NSL) * SLOT
    a(f"s_add_u32 m0, s50, {sl}")
    for q in range(4):
        a(f"s_add_u32 s42, s48, {c * 16 * 16384 + q * (16384 - 1024)}")
        a(f"buffer_load_dwordx4 v5, s[24:27], s42 offen offset:{q * 1024} lds")
    a(f"s_add_u32 m0, s50, {sl + 16384}")
    for kq in range(2):
        a(f"s_add_u32 s42, s49, {c * 8 * 32768 + kq * (32768 - 2048)}")
        for hf in range(2):
            a(f"buffer_load_dwordx4 v5, s[28:31], s42 offen offset:{kq * 2048 + hf * 1024} lds")


def red32(a, v, t):
    for m in ("quad_perm:[1,0,3,2]", "quad_perm:[2,3,0,1]", "row_half_mirror", "row_mirror"):
        a(f"v_max_f32_dpp v{v}, v{v}, v{v} {m} row_mask:0xf bank_mask:0xf")
    a(f"""
    v_mov_b32 v{t}, v{v}
    v_permlane16_swap_b32 v{v}, v{t}
    v_max_f32 v{v}, v{v}, v{t}
    """)


def mainloop(a, ch):
    def reads(c, ks, buf):
        sl = c % NSL
        ua, wa = 8 + (sl >> 1), 11 + (sl >> 1)
        o = (sl & 1) * SLOT
        f = FRG + 16 * buf
        for tp in range(2):
            for q in range(2):
                a(f"ds_read_b64 {vr(f + 4 * tp + 2 * q, 2)}, v{ua} offset:{o + (4 * ks + q) * 1024 + tp * 256}")
        for x in range(2):
            a(f"ds_read_b128 {vr(f + 8 + 4 * x, 4)}, v{wa} offset:{o + 2 * ks * 2048 + x * 512}")

    def comp(first, buf):
        f = FRG + 16 * buf
        for x in range(2):
            for tp in range(2):
                acc = AC + 32 * x + 16 * tp
                c_ = "0" if first else vr(acc, 16)
                U, W = vr(f + 4 * tp, 4), vr(f + 8 + 4 * x, 4)
                if ch == 1 and x == 0:
                    a(f"v_mfma_f32_32x32x16_bf16 {vr(acc, 16)}, {U}, {W}, {c_}")
                else:
                    a(f"v_mfma_f32_32x32x16_bf16 {vr(acc, 16)}, {W}, {U}, {c_}")
                if x == 0:
                    for q in range(4):
                        src = f + 4 * tp + q
                        if first and q == 0:
                            a(f"v_and_b32 v4, v14, v{src}")
                            src = 4
                        cc = "0" if (first and q == 0) else f"v{T + tp}"
                        a(f"v_dot2_f32_bf16 v{T + tp}, v{src}, v{src}, {cc}")
    for c in range(9):
        a(f"s_waitcnt vmcnt({8 * min(3, 8 - c)})\n s_barrier")
        if c in (0, 1, 4):
            stamp(a, {0: 2, 1: 3, 4: 4}[c])
        reads(c, 0, 0)
        if c + 4 < 9:
            dma(a, c + 4)
        for ks in range(4):
            if ks < 3:
                reads(c, ks + 1, (ks + 1) & 1)
                a("s_waitcnt lgkmcnt(6)")
            else:
                a("s_waitcnt lgkmcnt(0)")
            comp(c == 0 and ks == 0, ks & 1)


def rstd(a):
    stamp(a, 5)
    a(f"""
    v_permlane32_swap_b32 v{T}, v{T + 1}
    v_mov_b32 v4, {f32bits(EPS):#x}
    v_add_f32 v{T + 2}, v{T}, v{T + 1}
    v_fmamk_f32 v{T + 2}, v{T + 2}, {f32bits(1 / 576):#x}, v4
    v_rsq_f32 v{T + 2}, v{T + 2}
    s_nop 0
    v_mov_b32 v{T + 4}, v{T + 2}
    v_mov_b32 v{T + 5}, v{T + 2}
    v_permlane32_swap_b32 v{T + 4}, v{T + 5}
    """)


def kernels():
    a = A()
    n = "qkv"
    prologue(a, 256, n)
    a(f"""
    s_and_b32 s41, s2, 7
    s_lshr_b32 s42, s2, 3
    s_lshr_b32 s46, s41, 1
    s_lshl_b32 s46, s46, 2
    s_and_b32 s43, s42, 3
    s_add_u32 s46, s46, s43
    s_and_b32 s47, s41, 1
    s_lshl_b32 s47, s47, 3
    s_lshr_b32 s43, s42, 2
    s_add_u32 s47, s47, s43
    s_and_b32 s44, s40, 1
    s_lshr_b32 s45, s40, 1
    v_lshlrev_b32 v5, 4, v1
    s_lshl_b32 s48, s40, 16
    s_lshl_b32 s41, s46, 10
    s_add_u32 s48, s48, s41
    s_lshl_b32 s49, s40, 16
    s_lshl_b32 s41, s47, 11
    s_add_u32 s49, s49, s41
    s_lshl_b32 s50, s40, 12
    s_waitcnt lgkmcnt(0)
    """)
    srd(a, 24, 20, 144 * 16384, UB)
    srd(a, 28, 20, 72 * 32768, WP)
    for c in range(4):
        dma(a, c)
    stamp(a, 1)
    srd(a, 32, 20, 32 * 65536, QI)
    srd(a, 36, 20, 32 * KVS, KV)
    srd(a, 52, 20, 32 * 8192, QX)
    srd(a, 56, 20, 32 * 256, KMX)
    a(f"""
    s_lshl_b32 s41, s44, 6
    v_add_u32 v15, s41, v2
    v_lshl_add_u32 v8, v3, 8, v15
    v_lshlrev_b32 v8, 3, v8
    v_add_u32 v9, {2 * SLOT}, v8
    v_add_u32 v10, {4 * SLOT}, v8
    s_lshl_b32 s41, s45, 6
    v_lshl_add_u32 v11, v3, 7, v2
    v_add_u32 v11, s41, v11
    v_lshlrev_b32 v11, 4, v11
    v_add_u32 v11, 16384, v11
    v_add_u32 v12, {2 * SLOT}, v11
    v_add_u32 v13, {4 * SLOT}, v11
    v_cmp_eq_u32 vcc, 0, v3
    v_mov_b32 v14, -1
    v_mov_b32 v4, 0xffff
    v_cndmask_b32 v14, v14, v4, vcc
    s_mul_i32 s60, s47, {2 * KVS}
    s_mul_i32 s41, s46, {CH}
    s_add_u32 s60, s60, s41
    s_lshl_b32 s61, s46, 1
    s_add_u32 s61, s61, s44
    s_lshl_b32 s61, s61, 3
    s_lshl_b32 s41, s47, 9
    s_add_u32 s61, s61, s41
    s_cmp_eq_u32 s45, 0
    s_cbranch_scc0 {n}_ch1
    """)
    mainloop(a, 0)
    rstd(a)
    a(f"""
    v_lshlrev_b32 v6, 4, v15
    v_lshl_add_u32 v7, v3, 11, v6
    v_lshl_add_u32 v6, v3, 15, v6
    s_lshl_b32 s62, s47, 17
    s_lshl_b32 s41, s46, 11
    s_add_u32 s62, s62, s41
    """)
    P = FRG
    for x in range(2):
        a(f"s_add_u32 s63, s62, {x * 65536}\n s_add_u32 s64, s60, {x * KVS}")
        for tp in range(2):
            acc = AC + 32 * x + 16 * tp
            p = P + 8 * (2 * x + tp)
            for q in range(8):
                a(f"v_pk_mul_f32 {vr(acc + 2 * q, 2)}, {vr(acc + 2 * q, 2)}, {vr(T + 4, 2)} op_sel:[0,{tp}] op_sel_hi:[1,{tp}]")
                a(f"v_cvt_pk_bf16_f32 v{p + q}, v{acc + 2 * q}, v{acc + 2 * q + 1}")
            a(f"""
            buffer_store_dwordx4 {vr(p, 4)}, v6, s[32:35], s63 offen offset:{tp * 512}
            buffer_store_dwordx4 {vr(p + 4, 4)}, v7, s[36:39], s64 offen offset:{tp * 512}
            """)
            nn = T + 8 + 2 * x + tp
            for q in range(4):
                cc = "0" if q == 0 else f"v{nn}"
                a(f"v_dot2_f32_bf16 v{nn}, v{p + 4 + q}, v{p + 4 + q}, {cc}")
        a(f"""
        v_permlane32_swap_b32 v{T + 8 + 2 * x}, v{T + 9 + 2 * x}
        v_add_f32 v{T + 8 + 2 * x}, v{T + 8 + 2 * x}, v{T + 9 + 2 * x}
        """)
    a(f"""
    v_permlane32_swap_b32 v{T + 8}, v{T + 10}
    v_max_f32 v{T + 8}, v{T + 8}, v{T + 10}
    """)
    red32(a, T + 8, T + 9)
    a(f"""
    v_lshlrev_b32 v6, 8, v3
    v_cmp_eq_u32 vcc, 0, v2
    s_and_saveexec_b64 s[66:67], vcc
    buffer_store_dword v{T + 8}, v6, s[56:59], s61 offen
    s_endpgm
    {n}_ch1:
    """)
    mainloop(a, 1)
    rstd(a)
    RS = T + 16
    a(f"""
    s_lshl_b32 s41, s44, 8
    v_lshl_add_u32 v6, v1, 2, s41
    ds_write_b32 v6, v{T + 2}
    v_lshl_add_u32 v6, v3, 4, s41
    s_waitcnt lgkmcnt(0)
    """)
    for tp in range(2):
        for g in range(4):
            a(f"ds_read_b128 {vr(RS + 16 * tp + 4 * g, 4)}, v6 offset:{(32 * tp + 8 * g) * 4}")
    a(f"""
    v_lshlrev_b32 v6, 2, v15
    v_mul_u32_u24 v4, {KVS}, v3
    v_add_u32 v7, v4, v6
    v_lshl_add_u32 v6, v3, 13, v6
    s_lshl_b32 s62, s47, 14
    s_lshl_b32 s41, s46, 9
    s_add_u32 s62, s62, s41
    v_lshrrev_b32 v8, 4, v15
    v_bfe_u32 v9, v15, 2, 1
    v_lshl_add_u32 v8, v8, 1, v9
    v_mul_u32_u24 v8, {VP}, v8
    v_bfe_u32 v9, v15, 3, 1
    v_lshl_add_u32 v8, v9, 3, v8
    v_and_b32 v9, 3, v15
    v_lshl_add_u32 v8, v9, 1, v8
    v_add_u32 v8, v8, v4
    v_mov_b32 v9, 0x3f80
    s_add_u32 s63, s60, {CH_K2}
    s_add_u32 s64, s60, {CH_V}
    """)
    for tp in range(2):
        acc = AC + 32 + 16 * tp
        p = P + 4 * tp
        for q in range(3):
            a(f"v_pk_mul_f32 {vr(acc + 2 * q, 2)}, {vr(acc + 2 * q, 2)}, {vr(T + 4, 2)} op_sel:[0,{tp}] op_sel_hi:[1,{tp}]")
            a(f"v_cvt_pk_bf16_f32 v{p + q}, v{acc + 2 * q}, v{acc + 2 * q + 1}")
        o = tp * 4 * VP
        a(f"""
        buffer_store_dword v{p}, v6, s[52:55], s62 offen offset:{tp * 128}
        buffer_store_dword v{p + 1}, v7, s[36:39], s63 offen offset:{tp * 128}
        buffer_store_short v{p + 2}, v8, s[36:39], s64 offen offset:{o + 256}
        buffer_store_short_d16_hi v{p + 2}, v8, s[36:39], s64 offen offset:{o + 272}
        buffer_store_short v9, v8, s[36:39], s64 offen offset:{o + 288}
        v_dot2_f32_bf16 v{T + 8 + tp}, v{p + 1}, v{p + 1}, 0
        """)
    a(f"v_max_f32 v{T + 8}, v{T + 8}, v{T + 9}")
    red32(a, T + 8, T + 9)
    a(f"""
    v_lshrrev_b32 v6, 4, v2
    v_mul_u32_u24 v6, {KVS}, v6
    v_and_b32 v7, 15, v2
    v_lshl_add_u32 v6, v7, 4, v6
    s_lshl_b32 s41, s44, 3
    v_add_u32 v7, s41, v3
    v_mul_u32_u24 v7, {VP}, v7
    v_add_u32 v6, v6, v7
    s_waitcnt lgkmcnt(0)
    """)
    for tp in range(2):
        acc = AC + 16 * tp
        p = P + 8 + 8 * tp
        for q in range(8):
            a(f"v_pk_mul_f32 {vr(acc + 2 * q, 2)}, {vr(acc + 2 * q, 2)}, {vr(RS + 16 * tp + 2 * q, 2)}")
            a(f"v_cvt_pk_bf16_f32 v{p + q}, v{acc + 2 * q}, v{acc + 2 * q + 1}")
        for m in range(2):
            a(f"buffer_store_dwordx4 {vr(p + 4 * m, 4)}, v6, s[36:39], s64 offen offset:{(4 * tp + 2 * m) * VP}")
    a(f"""
    v_lshlrev_b32 v6, 8, v3
    v_cmp_eq_u32 vcc, 0, v2
    s_and_saveexec_b64 s[66:67], vcc
    buffer_store_dword v{T + 8}, v6, s[56:59], s61 offen offset:4
    {n}_exit:
    s_endpgm
    """)
    return [("qkv_kernel", a.text(), 160)]


def launch():
    return ("qkv_kernel", 256, 256, QKV_LDS)
```

```python
import sys, importlib
import numpy as np
from common import *
import k_gemm

NAME = "interleave_layers__spectral_gfnet__softmax_full_mha__prompt"
HDR = open(f"cdna_kernels/{NAME}.s.ref").read().split("; Override launch")[0]


def tables():
    L = []
    for i in range(N):
        L.append(f".set cs{i}, 0x{bf16bits(np.sqrt(2 / N) * np.cos(2 * np.pi * i / N)):04x}")
    L.append(f".set cs576, 0x{bf16bits(1 / np.sqrt(N)):04x}")
    L.append(f".set cs577, 0x{bf16bits(-1 / np.sqrt(N)):04x}")
    L.append(".altmacro")
    L.append(""".macro E8 a,b,c,d,e,f,g,h
.short cs\\a,cs\\b,cs\\c,cs\\d,cs\\e,cs\\f,cs\\g,cs\\h
.endm""")
    L.append(""".p2align 8
T2:
.set d,0
.rept 576
E8 %(576+(d%2)),576,%(d),%((d+144)%576),%((2*d)%576),%((2*d+144)%576),%((3*d)%576),%((3*d+144)%576)
.set d,d+1
.endr
.set kb,1
.rept 71
.set d,0
.rept 576
.set x,(4*kb*d)%576
E8 %(x),%((x+144)%576),%((x+d)%576),%((x+d+144)%576),%((x+2*d)%576),%((x+2*d+144)%576),%((x+3*d)%576),%((x+3*d+144)%576)
.set d,d+1
.endr
.set kb,kb+1
.endr
.noaltmacro""")
    return "\n".join(L) + "\n"


def build(upto=9):
    ks = []
    launches = []
    mods = {}
    ks.append(("p0_kernel", k_gemm.k_p0(), 256))
    launches.append(("p0_kernel", k_gemm.P0_GRID, 256, k_gemm.P0_LDS))
    if upto > 1:
        import k_fft
        ks += k_fft.kernels()
        launches.append(k_fft.launch(1))
    if upto > 2:
        import k_qkv
        ks += k_qkv.kernels()
        launches.append(k_qkv.launch())
    if upto > 3:
        import k_attn
        ks += k_attn.kernels()
        launches.append(k_attn.launch())
    if upto > 4:
        ks.append(("p4_kernel", k_gemm.k_p4(), 256))
        launches.append(("p4_kernel", 192, 256, k_gemm.GEMM_LDS))
    if upto > 5:
        launches.append(k_fft.launch(5))
    if upto > 6:
        launches.append(k_qkv.launch())
    if upto > 7:
        launches.append(k_attn.launch())
    if upto > 8:
        ks.append(("p8_kernel", k_gemm.k_p8(), 256))
        launches.append(("p8_kernel", 192, 256, k_gemm.GEMM_LDS))
    out = HDR
    for (k, g, b, l) in launches:
        out += f"; @launch kernel={k} grid=({g},1,1) block=({b},1,1) lds={l}\n"
    out += '.amdgcn_target "amdgcn-amd-amdhsa--gfx950"\n.text\n'
    for (k, t, v) in ks:
        out += khead(k) + (t.replace("s_endpgm", "s_branch prof_end") if PROF else t)
    if PROF:
        out += prof_tail()
    out += '.section .rodata,"a"\n'
    for (k, t, v) in ks:
        out += kd(k, v)
    out += tables()
    return out


if __name__ == "__main__":
    upto = int(sys.argv[1]) if len(sys.argv) > 1 else 9
    dst = sys.argv[2] if len(sys.argv) > 2 else f"cdna_kernels/{NAME}.s"
    open(dst, "w").write(build(upto))
    print("wrote", dst)
```

```python
import numpy as np
from asmlib import A, vr, sr

N = 576
S = 2048
UB = 0x000000
WT = 0x240000
WP = 0x480000
WOP = 0x6C0000
WOT = 0x780000
SSP = 0x840000
KMX = 0x850000
QI = 0x880000
QX = 0xA80000
KV = 0xB00000
KVS = 0x26000
OB = 0x1000000
OX = 0x1200000
WS_END = 0x1300000

CH_K0, CH_K1, CH_K2, CH_V = 0, 2048, 4096, 4608
VP = 304
CH = 4608 + 16 * VP
KV_BYTES = 16 * CH

EPS = 1e-5


def f32bits(x):
    return int(np.array([x], np.float32).view(np.uint32)[0])


def bf16bits(x):
    u = int(np.array([x], np.float32).view(np.uint32)[0])
    return ((u + 0x7FFF + ((u >> 16) & 1)) >> 16) & 0xFFFF


def s_of_p(p):
    w, t, g, c, r = p >> 9, (p >> 8) & 1, (p >> 6) & 3, (p >> 2) & 15, p & 3
    return 32 * (16 * w + 4 * g + r) + 16 * t + c


def cmap():
    m = []
    for hp in range(16):
        hA, hB = 2 * hp, 2 * hp + 1
        for hd in (hA, hB):
            for rho in range(32):
                a, h, b = rho >> 3, (rho >> 2) & 1, rho & 3
                if a < 2:
                    m.append((0 * 576 + hd * 18 + 8 * h + 4 * a + b, 1))
                else:
                    m.append((1 * 576 + hd * 18 + 8 * h + 4 * (a - 2) + b, 0))
        for c in range(32):
            hd = hA if c < 16 else hB
            m.append((2 * 576 + hd * 18 + (c & 15), 0))
        for rho in range(32):
            a, h, b = rho >> 3, (rho >> 2) & 1, rho & 3
            hd = hB if h else hA
            if a == 0:
                m.append(((b >> 1) * 576 + hd * 18 + 16 + (b & 1), 1 if b < 2 else 0))
            elif a == 1 and b < 2:
                m.append((2 * 576 + hd * 18 + 16 + b, 0))
            else:
                m.append((-1, 0))
    return m


def row_of_c2(c2):
    if c2 < 512:
        return 18 * (c2 >> 4) + (c2 & 15)
    return 18 * ((c2 - 512) >> 1) + 16 + (c2 & 1)


QSCALE = 18 ** -0.5 * np.log2(np.e)


class VM:
    def __init__(self, a):
        self.a = a
        self.n = 0

    def issue(self, k=1):
        self.n += k
        return self.n

    def wait(self, mark):
        pend = self.n - mark
        self.a(f"s_waitcnt vmcnt({min(pend, 63)})")


import os
PROF = bool(os.environ.get("PROF"))
PROFB = 0x2000000


def stamp(a, i):
    if PROF:
        a(f"s_memrealtime s[{72 + 2 * i}:{73 + 2 * i}]")


def prof_tail():
    t = """
prof_exit0:
  s_endpgm
prof_end:
  s_memrealtime s[86:87]
  s_memtime s[96:97]
  s_waitcnt vmcnt(0) lgkmcnt(0)
  s_memrealtime s[88:89]
  s_mov_b64 exec, 1
  s_bfe_u32 s41, s18, 0x40009
  s_lshl_b32 s41, s41, 9
  s_add_u32 s41, s41, s2
  s_lshl_b32 s41, s41, 3
  s_add_u32 s41, s41, s90
  s_lshl_b32 s41, s41, 6
  s_add_u32 s24, s20, %d
  s_addc_u32 s25, s21, 0
  s_mov_b32 s26, 0x400000
  s_mov_b32 s27, 0x20000
  s_getreg_b32 s91, hwreg(HW_REG_HW_ID)
  s_getreg_b32 s92, hwreg(HW_REG_XCC_ID)
  s_waitcnt lgkmcnt(0)
  v_mov_b32 v0, 0
""" % PROFB
    for i in range(9):
        t += f"  v_mov_b32 v{4 + i}, s{72 + 2 * i}\n"
    t += """  v_mov_b32 v13, s91
  v_mov_b32 v14, s92
  v_mov_b32 v15, 0x1234
  s_sub_u32 s96, s96, s94
  v_mov_b32 v13, s96
  s_nop 4
  buffer_store_dwordx4 v[4:7], v0, s[24:27], s41 offen
  buffer_store_dwordx4 v[8:11], v0, s[24:27], s41 offen offset:16
  buffer_store_dwordx4 v[12:15], v0, s[24:27], s41 offen offset:32
  s_endpgm
"""
    return t


def prologue(a, grid, name):
    if PROF:
        for i in range(9):
            a(f"s_mov_b32 s{72 + 2 * i}, 0")
        stamp(a, 0)
        a("s_memtime s[94:95]")
    a(f"""
    s_cmp_ge_u32 s2, {grid}
    s_cbranch_scc1 {"prof_exit0" if PROF else name + "_exit"}
    s_load_dwordx16 s[4:19], s[0:1], 0
    s_load_dwordx2 s[20:21], s[0:1], 64
    v_lshrrev_b32 v4, 6, v0
    v_and_b32 v1, 63, v0
    v_readfirstlane_b32 s40, v4
    v_and_b32 v2, 31, v0
    v_bfe_u32 v3, v0, 5, 1
    """)
    if PROF:
        a("s_mov_b32 s90, s40")


def srd(a, d, base, nbytes, off=0):
    if off:
        a(f"s_add_u32 s{d}, s{base}, {off}\n s_addc_u32 s{d + 1}, s{base + 1}, 0")
    else:
        a(f"s_mov_b32 s{d}, s{base}\n s_mov_b32 s{d + 1}, s{base + 1}")
    a(f"s_mov_b32 s{d + 2}, {nbytes}\n s_mov_b32 s{d + 3}, 0x20000")


def srd_tab(a, d, sym, nbytes):
    a(f"""
    s_getpc_b64 s[{d}:{d + 1}]
    s_add_u32 s{d}, s{d}, {sym}@rel32@lo+4
    s_addc_u32 s{d + 1}, s{d + 1}, {sym}@rel32@hi+12
    s_mov_b32 s{d + 2}, {nbytes}
    s_mov_b32 s{d + 3}, 0x20000
    """)


def kd(name, vgpr=256, sgpr=102):
    acc = (vgpr + 3) // 4 * 4
    return f""".p2align 6
.amdhsa_kernel {name}
  .amdhsa_next_free_vgpr {vgpr}
  .amdhsa_next_free_sgpr {sgpr}
  .amdhsa_accum_offset {acc}
  .amdhsa_group_segment_fixed_size 0
  .amdhsa_kernarg_size 72
  .amdhsa_user_sgpr_count 2
  .amdhsa_user_sgpr_kernarg_segment_ptr 1
  .amdhsa_system_sgpr_workgroup_id_x 1
.end_amdhsa_kernel
"""


def khead(name):
    return f".globl {name}\n.p2align 8\n.type {name},@function\n{name}:\n"


ACC0 = 16
RING0 = 112
RED_BYTES = 4 * 3 * 6 * 1024


def gemm(a, vm, steps, depth, stage0=None, after_initial=None, ldsbase=None):
    n = len(steps)
    marks = [None] * n
    for i in range(min(depth, n)):
        steps[i]["issue"](RING0 + 20 * (i % depth))
        marks[i] = vm.n
    stamp(a, 1)
    if after_initial:
        after_initial()
    a("v_lshlrev_b32 v8, 4, v1")
    if ldsbase is not None:
        a(f"v_add_u32 v8, s{ldsbase}, v8")
    for ap in (1, 2, 3):
        a(f"s_xor_b32 s41, s40, {ap}\n s_mul_i32 s41, s41, {3 * 6144}\n s_add_u32 s41, s41, {(ap - 1) * 6144}\n v_add_u32 v{4 + ap}, s41, v8")
    a(f"s_mul_i32 s41, s40, {3 * 6144}\n v_add_u32 v8, s41, v8")
    for i in range(n):
        base = RING0 + 20 * (i % depth)
        vm.wait(marks[i])
        if i == 0:
            stamp(a, 2)
        bb = base + 12
        if steps[i].get("tr2"):
            st = stage0 + 8 * (i % 2)
            for q in range(4):
                a(f"v_perm_b32 v{st + q}, v{bb + 2 * q + 1}, v{bb + 2 * q}, s44")
                a(f"v_perm_b32 v{st + 4 + q}, v{bb + 2 * q + 1}, v{bb + 2 * q}, s45")
            bb = st
        for ta in range(3):
            for tb in range(2):
                acc = ACC0 + 16 * (2 * ta + tb)
                c = "0" if i == 0 else vr(acc, 16)
                a(f"v_mfma_f32_32x32x16_bf16 {vr(acc, 16)}, {vr(base + 4 * ta, 4)}, {vr(bb + 4 * tb, 4)}, {c}")
        if i + depth < n:
            steps[i + depth]["issue"](base)
            marks[i + depth] = vm.n
    stamp(a, 3)
    for tt in range(6):
        for ap in (1, 2, 3):
            a(f"ds_write_b128 v{4 + ap}, {vr(ACC0 + 16 * tt + 4 * ap, 4)} offset:{tt * 1024}")
    a("s_waitcnt lgkmcnt(0)\n s_barrier")
    stamp(a, 4)
    R = RING0
    for tt in range(6):
        for sl in range(3):
            a(f"ds_read_b128 {vr(R + 12 * tt + 4 * sl, 4)}, v8 offset:{sl * 6144 + tt * 1024}")
    for tt in range(6):
        a(f"s_waitcnt lgkmcnt({min(15, 3 * (5 - tt))})")
        acc = ACC0 + 16 * tt
        r = R + 12 * tt
        for q in (0, 2):
            a(f"v_pk_add_f32 {vr(r + q, 2)}, {vr(r + q, 2)}, {vr(r + 4 + q, 2)}")
            a(f"v_pk_add_f32 {vr(acc + q, 2)}, {vr(acc + q, 2)}, {vr(r + 8 + q, 2)}")
        for q in (0, 2):
            a(f"v_pk_add_f32 {vr(acc + q, 2)}, {vr(acc + q, 2)}, {vr(r + q, 2)}")


def ld_blk(a, vm, dst, nt, voff, srdn, soff_reg, soff_imm, tile_stride=512):
    if soff_reg is None:
        a(f"s_mov_b32 s42, {soff_imm}")
    else:
        a(f"s_add_u32 s42, s{soff_reg}, {soff_imm}")
    for t in range(nt):
        a(f"buffer_load_dwordx4 {vr(dst + 4 * t, 4)}, v{voff}, {sr(srdn, 4)}, s42 offen offset:{t * tile_stride}")
        vm.issue()
```

```python
from common import *
from k_qkv import red32

ATT_LDS = 163840
FLAG = 155648
MXA = 155648 + 1024

OA, OBB = 16, 32
SB = (48, 64)
P = 80
QM = (88, 92)
QE = (96, 98)
KM = (100, 104)
KE = (108, 110)
VF = (112, 120)
T = 128
ROUNDS = 19
ZV = int(os.environ.get('ZV', 1))


def kreads(a, j, buf):
    o = (j // 4) * 2 * CH
    kt = j % 4
    a(f"ds_read_b128 {vr(KM[buf], 4)}, v6 offset:{o + kt * 512}")
    a(f"ds_read_b32 v{KE[buf]}, v7 offset:{o + CH_K2 + kt * 128}")


def vreads(a, j, buf):
    o = (j // 4) * 2 * CH
    kt = j % 4
    if ZV:
        a("s_mov_b64 exec, s[58:59]")
    for m in range(2):
        a(f"ds_read_b128 {vr(VF[buf] + 4 * m, 4)}, v8 offset:{o + CH_V + (2 * (2 * kt + m)) * VP}")
    if ZV:
        a("s_mov_b64 exec, -1")


def sext(a, sb, kbuf, tq):
    a(f"v_mfma_f32_32x32x8bf16_1k {vr(SB[sb], 16)}, {vr(KE[kbuf], 2)}, {vr(QE[tq], 2)}, 0")


def smain(a, sb, kbuf, tq):
    a(f"v_mfma_f32_32x32x16_bf16 {vr(SB[sb], 16)}, {vr(KM[kbuf], 4)}, {vr(QM[tq], 4)}, {vr(SB[sb], 16)}")


def pv(a, o, vbuf, m):
    a(f"v_mfma_f32_32x32x16_bf16 {vr(o, 16)}, {vr(VF[vbuf] + 4 * m, 4)}, {vr(P + 4 * m, 4)}, {vr(o, 16)}")


def exps(a, sb, lo, hi):
    for r in range(lo, hi):
        a(f"v_exp_f32 v{SB[sb] + r}, v{SB[sb] + r}")


def cvts(a, sb, lo, hi):
    for r in range(lo, hi):
        a(f"v_cvt_pk_bf16_f32 v{P + r}, v{SB[sb] + 2 * r}, v{SB[sb] + 2 * r + 1}")


def body(a, j):
    kb, nb = j & 1, (j + 1) & 1
    kreads(a, j + 1, nb)
    sext(a, 1, kb, 1)
    exps(a, 0, 0, 4)
    pv(a, OBB, nb, 1)
    exps(a, 0, 4, 8)
    cvts(a, 0, 0, 4)
    smain(a, 1, kb, 1)
    exps(a, 0, 8, 12)
    a("s_waitcnt lgkmcnt(2)")
    pv(a, OA, kb, 0)
    vreads(a, j + 1, nb)
    exps(a, 0, 12, 16)
    cvts(a, 0, 4, 8)
    a("s_waitcnt lgkmcnt(2)")
    sext(a, 0, nb, 0)
    exps(a, 1, 0, 4)
    pv(a, OA, kb, 1)
    exps(a, 1, 4, 8)
    cvts(a, 1, 0, 4)
    smain(a, 0, nb, 0)
    exps(a, 1, 8, 12)
    pv(a, OBB, kb, 0)
    exps(a, 1, 12, 16)
    cvts(a, 1, 4, 8)


def kernels():
    a = A()
    n = "attn"
    prologue(a, 256, n)
    a(f"""
    s_and_b32 s41, s2, 7
    s_lshl_b32 s46, s41, 2
    s_bfe_u32 s41, s2, 0x20003
    s_add_u32 s46, s46, s41
    s_lshr_b32 s47, s2, 5
    s_and_b32 s44, s40, 1
    s_lshr_b32 s45, s40, 1
    s_mov_b32 s48, 0
    v_lshlrev_b32 v5, 4, v1
    s_mul_i32 s49, s46, {KVS}
    s_lshl_b32 s50, s40, 10
    s_add_u32 s49, s49, s50
    s_lshl_b32 s41, s47, 8
    s_lshl_b32 s42, s45, 6
    s_add_u32 s41, s41, s42
    s_lshl_b32 s42, s44, 5
    v_add_u32 v9, s41, v2
    v_add_u32 v9, s42, v9
    v_xor_b32 v10, 32, v9
    v_lshlrev_b32 v4, 15, v3
    v_lshl_add_u32 v11, v9, 4, v4
    v_lshl_add_u32 v12, v10, 4, v4
    v_lshlrev_b32 v9, 2, v9
    v_lshlrev_b32 v10, 2, v10
    v_lshlrev_b32 v13, 3, v2
    s_lshl_b32 s51, s46, 16
    s_lshl_b32 s52, s46, 13
    s_lshl_b32 s53, s46, 8
    s_waitcnt lgkmcnt(0)
    """)
    srd(a, 24, 20, 32 * KVS, KV)
    srd(a, 28, 20, 32 * 65536, QI)
    srd(a, 32, 20, 32 * 8192, QX)
    srd(a, 36, 20, 32 * 256, KMX)
    a(f"""
    buffer_load_dwordx2 {vr(T, 2)}, v13, s[36:39], s53 offen
    buffer_load_dwordx4 {vr(QM[0], 4)}, v11, s[28:31], s51 offen
    buffer_load_dwordx4 {vr(QM[1], 4)}, v12, s[28:31], s51 offen
    buffer_load_dword v{QE[0]}, v9, s[32:35], s52 offen
    buffer_load_dword v{QE[1]}, v10, s[32:35], s52 offen
    {n}_dma:
    s_mov_b32 m0, s50
    s_mov_b32 s42, s49
    """)
    for r in range(ROUNDS):
        a("buffer_load_dwordx4 v5, s[24:27], s42 offen lds")
        if r + 1 < ROUNDS:
            a("s_add_u32 m0, m0, 8192\n s_add_u32 s42, s42, 8192")
    stamp(a, 1)
    srd(a, 28, 20, 64 * 32768, OB)
    srd(a, 32, 20, 32 * 8192, OX)
    a(f"""
    s_mul_i32 s41, s44, {CH}
    v_lshlrev_b32 v13, 4, v2
    v_lshl_add_u32 v13, v3, 11, v13
    v_add_u32 v13, s41, v13
    v_lshlrev_b32 v14, 2, v2
    v_add_u32 v14, s41, v14
    v_bfe_u32 v4, v2, 2, 1
    v_lshlrev_b32 v4, 3, v4
    v_bfe_u32 v15, v2, 3, 1
    v_lshl_add_u32 v4, v15, 2, v4
    v_and_b32 v15, 3, v2
    v_add_u32 v4, v4, v15
    v_min_u32 v15, 18, v2
    v_cmp_gt_u32 vcc, 16, v2
    v_cndmask_b32 v4, v15, v4, vcc
    v_mul_u32_u24 v15, {VP}, v3
    v_lshl_add_u32 v15, v4, 4, v15
    v_add_u32 v15, s41, v15
    v_mov_b32 v{KE[0] + 1}, 0x3f803f80
    v_mov_b32 v{KE[1] + 1}, 0x3f803f80
    v_mov_b32 v4, {FLAG}
    v_mov_b32 v{T + 2}, 0
    ds_write_b32 v4, v{T + 2}
    v_cmp_eq_u32 vcc, 0, v3
    s_cmp_lg_u32 s48, 0
    s_cbranch_scc1 {n}_maxpass
    s_waitcnt vmcnt({ROUNDS})
    v_add_f32 v{T}, v{T}, v{T + 1}
    v_cndmask_b32 v{QE[0]}, 0, v{QE[0]}, vcc
    v_cndmask_b32 v{QE[1]}, 0, v{QE[1]}, vcc
    """)
    red32(a, T, T + 1)
    for tq in range(2):
        t = T + 2 + tq
        a(f"v_dot2_f32_bf16 v{t}, v{QE[tq]}, v{QE[tq]}, 0")
        for q in range(4):
            a(f"v_dot2_f32_bf16 v{t}, v{QM[tq] + q}, v{QM[tq] + q}, v{t}")
    a(f"""
    v_mov_b32 v{T + 4}, v{T + 2}
    v_mov_b32 v{T + 5}, v{T + 3}
    v_permlane32_swap_b32 v{T + 2}, v{T + 4}
    v_permlane32_swap_b32 v{T + 3}, v{T + 5}
    v_add_f32 v{T + 2}, v{T + 2}, v{T + 4}
    v_add_f32 v{T + 3}, v{T + 3}, v{T + 5}
    v_mul_f32 v{T + 2}, v{T + 2}, v{T}
    v_mul_f32 v{T + 3}, v{T + 3}, v{T}
    v_sqrt_f32 v{T + 2}, v{T + 2}
    v_sqrt_f32 v{T + 3}, v{T + 3}
    {n}_setm:
    """)
    for tq in range(2):
        m = T + 2 + tq
        a(f"""
        v_sub_f32 v{m}, 0, v{m}
        v_and_b32 v{T + 4}, 0xffff0000, v{m}
        v_sub_f32 v{m}, v{m}, v{T + 4}
        v_and_b32 v{T + 5}, 0xffff0000, v{m}
        v_sub_f32 v{m}, v{m}, v{T + 5}
        v_lshrrev_b32 v{T + 4}, 16, v{T + 4}
        v_or_b32 v{T + 4}, v{T + 4}, v{T + 5}
        v_and_b32 v{m}, 0xffff0000, v{m}
        v_cndmask_b32 v{QE[tq] + 1}, v{m}, v{T + 4}, vcc
        """)
    a(f"""
    v_mov_b32 v6, v13
    v_mov_b32 v7, v14
    v_mov_b32 v8, v15
    s_mov_b32 s54, 0
    """)
    for r in range(16):
        a(f"v_mov_b32 v{OA + r}, 0\n v_mov_b32 v{OBB + r}, 0")
    for r in range(4):
        a(f"v_mov_b32 v{P + 4 + r}, 0")
    for r in range(16):
        a(f"v_mov_b32 v{VF[0] + r}, 0")
    a("s_mov_b32 s58, 0x47ffff\n s_mov_b32 s59, s58")
    stamp(a, 2)
    a(f"s_waitcnt vmcnt({ROUNDS - 3}) lgkmcnt(0)\n s_barrier")
    stamp(a, 3)
    if PROF:
        a("s_memtime s[82:83]")
    kreads(a, 0, 0)
    vreads(a, 0, 0)
    a("s_waitcnt lgkmcnt(2)")
    sext(a, 0, 0, 0)
    smain(a, 0, 0, 0)
    a(f"{n}_loop:")
    for j in range(3):
        body(a, j)
    a(f"""
    s_bitcmp1_b32 s54, 0
    s_cbranch_scc1 {n}_nobar
    s_cmp_gt_u32 s54, 2
    s_cbranch_scc1 {n}_nobar
    s_waitcnt vmcnt({ROUNDS - 7})
    s_cmp_eq_u32 s54, 0
    s_cbranch_scc1 {n}_bar
    s_waitcnt vmcnt(0)
    {n}_bar:
    s_barrier
    {n}_nobar:
    """)
    body(a, 3)
    a(f"""
    v_add_u32 v6, {2 * CH}, v6
    v_add_u32 v7, {2 * CH}, v7
    v_add_u32 v8, {2 * CH}, v8
    s_add_u32 s54, s54, 1
    s_cmp_lt_u32 s54, 8
    s_cbranch_scc1 {n}_loop
    """)
    pv(a, OBB, 1, 1)
    stamp(a, 4)
    if PROF:
        a("s_memtime s[84:85]")
    a(f"""
    s_mul_i32 s41, s40, 3072
    s_xor_b32 s42, s40, 1
    s_mul_i32 s42, s42, 3072
    v_add_u32 v6, s41, v5
    v_add_u32 v7, s42, v5
    v_mov_b32 v4, {FLAG}
    v_mov_b32 v{T}, {f32bits(2.0 ** -60):#x}
    v_cmp_nge_f32 s[56:57], v{OA + 10}, v{T}
    v_cmp_nge_f32 vcc, v{OBB + 10}, v{T}
    ds_write_b128 v6, {vr(OBB, 4)}
    ds_write_b128 v6, {vr(OBB + 4, 4)} offset:1024
    ds_write_b128 v6, {vr(OBB + 8, 4)} offset:2048
    s_or_b64 vcc, vcc, s[56:57]
    s_cbranch_vccz {n}_noflag
    ds_write_b32 v4, v4
    {n}_noflag:
    s_waitcnt lgkmcnt(0)
    s_barrier
    ds_read_b32 v{T}, v4
    ds_read_b128 {vr(SB[0] + 8, 4)}, v7 offset:2048
    ds_read_b128 {vr(SB[0], 4)}, v7
    ds_read_b128 {vr(SB[0] + 4, 4)}, v7 offset:1024
    s_waitcnt lgkmcnt(3)
    v_readfirstlane_b32 s41, v{T}
    s_cmp_eq_u32 s48, 0
    s_cselect_b32 s41, s41, 0
    s_cmp_lg_u32 s41, 0
    s_cbranch_scc1 {n}_fallback
    s_waitcnt lgkmcnt(2)
    v_add_f32 v{T}, v{OA + 10}, v{SB[0] + 10}
    v_rcp_f32 v{T}, v{T}
    v_pk_add_f32 {vr(OA + 8, 2)}, {vr(OA + 8, 2)}, {vr(SB[0] + 8, 2)}
    s_waitcnt lgkmcnt(0)
    """)
    for q in range(4):
        a(f"v_pk_add_f32 {vr(OA + 2 * q, 2)}, {vr(OA + 2 * q, 2)}, {vr(SB[0] + 2 * q, 2)}")
    for q in range(5):
        a(f"v_pk_mul_f32 {vr(OA + 2 * q, 2)}, {vr(OA + 2 * q, 2)}, {vr(T, 2)} op_sel_hi:[1,0]")
        a(f"v_cvt_pk_bf16_f32 v{P + q}, v{OA + 2 * q}, v{OA + 2 * q + 1}")
    a(f"""
    buffer_store_dwordx4 {vr(P, 4)}, v11, s[28:31], s51 offen
    s_mov_b32 exec_hi, 0
    buffer_store_dword v{P + 4}, v9, s[32:35], s52 offen
    {n}_exit:
    s_endpgm
    {n}_fallback:
    s_waitcnt lgkmcnt(0)
    s_mov_b32 s48, 1
    s_barrier
    s_branch {n}_dma
    {n}_maxpass:
    v_mov_b32 v6, v13
    v_mov_b32 v7, v14
    v_mov_b32 v{QE[0] + 1}, 0
    v_mov_b32 v{QE[1] + 1}, 0
    v_mov_b32 v{T + 2}, 0xff800000
    v_mov_b32 v{T + 3}, 0xff800000
    s_mov_b32 s54, 0
    s_waitcnt vmcnt(0) lgkmcnt(0)
    s_barrier
    {n}_mloop:
    """)
    for kt in range(4):
        kreads(a, kt, 0)
        a("s_waitcnt lgkmcnt(0)")
        for tq in range(2):
            sext(a, tq, 0, tq)
            smain(a, tq, 0, tq)
        for tq in range(2):
            for q in range(8):
                a(f"v_max3_f32 v{T + 2 + tq}, v{SB[tq] + 2 * q}, v{SB[tq] + 2 * q + 1}, v{T + 2 + tq}")
    a(f"""
    v_add_u32 v6, {2 * CH}, v6
    v_add_u32 v7, {2 * CH}, v7
    s_add_u32 s54, s54, 1
    s_cmp_lt_u32 s54, 8
    s_cbranch_scc1 {n}_mloop
    v_mov_b32 v{T + 4}, v{T + 2}
    v_mov_b32 v{T + 5}, v{T + 3}
    v_permlane32_swap_b32 v{T + 2}, v{T + 4}
    v_permlane32_swap_b32 v{T + 3}, v{T + 5}
    v_max_f32 v{T + 2}, v{T + 2}, v{T + 4}
    v_max_f32 v{T + 3}, v{T + 3}, v{T + 5}
    s_lshl_b32 s41, s40, 9
    s_add_u32 s41, s41, {MXA}
    v_lshlrev_b32 v4, 3, v1
    v_add_u32 v6, s41, v4
    s_xor_b32 s41, s41, 512
    v_add_u32 v7, s41, v4
    ds_write_b64 v6, {vr(T + 2, 2)}
    s_waitcnt lgkmcnt(0)
    s_barrier
    ds_read_b64 {vr(T + 4, 2)}, v7
    s_waitcnt lgkmcnt(0)
    v_max_f32 v{T + 2}, v{T + 2}, v{T + 5}
    v_max_f32 v{T + 3}, v{T + 3}, v{T + 4}
    v_cmp_eq_u32 vcc, 0, v3
    s_branch {n}_setm
    """)
    return [("attn_kernel", a.text(), 136)]


def launch():
    return ("attn_kernel", 256, 512, ATT_LDS)
```

```python
from common import *

SLOT = 32768
NSL = 5
QKV_LDS = NSL * SLOT
AC = 16
FRG = 80
T = 112


def dma(a, c):
    sl = (c % NSL) * SLOT
    a(f"s_add_u32 m0, s50, {sl}")
    for q in range(4):
        a(f"s_add_u32 s42, s48, {c * 16 * 16384 + q * (16384 - 1024)}")
        a(f"buffer_load_dwordx4 v5, s[24:27], s42 offen offset:{q * 1024} lds")
    a(f"s_add_u32 m0, s50, {sl + 16384}")
    for kq in range(2):
        a(f"s_add_u32 s42, s49, {c * 8 * 32768 + kq * (32768 - 2048)}")
        for hf in range(2):
            a(f"buffer_load_dwordx4 v5, s[28:31], s42 offen offset:{kq * 2048 + hf * 1024} lds")


def red32(a, v, t):
    for m in ("quad_perm:[1,0,3,2]", "quad_perm:[2,3,0,1]", "row_half_mirror", "row_mirror"):
        a(f"v_max_f32_dpp v{v}, v{v}, v{v} {m} row_mask:0xf bank_mask:0xf")
    a(f"""
    v_mov_b32 v{t}, v{v}
    v_permlane16_swap_b32 v{v}, v{t}
    v_max_f32 v{v}, v{v}, v{t}
    """)


INIT = int(os.environ.get('QINIT', 2))
PART = 4 * SLOT


def mainloop(a, ch):
    def reads(t):
        c, ks = t >> 2, t & 3
        sl = c % NSL
        ua, wa = 8 + (sl >> 1), 11 + (sl >> 1)
        o = (sl & 1) * SLOT
        f = FRG + 16 * (t & 1)
        for tp in range(2):
            for q in range(2):
                a(f"ds_read_b64 {vr(f + 4 * tp + 2 * q, 2)}, v{ua} offset:{o + (4 * ks + q) * 1024 + tp * 256}")
        for x in range(2):
            a(f"ds_read_b128 {vr(f + 8 + 4 * x, 4)}, v{wa} offset:{o + 2 * ks * 2048 + x * 512}")

    def comp(t):
        f = FRG + 16 * (t & 1)
        for x in range(2):
            for tp in range(2):
                acc = AC + 32 * x + 16 * tp
                c_ = "0" if t == 0 else vr(acc, 16)
                U, W = vr(f + 4 * tp, 4), vr(f + 8 + 4 * x, 4)
                if ch == 1 and x == 0:
                    a(f"v_mfma_f32_32x32x16_bf16 {vr(acc, 16)}, {U}, {W}, {c_}")
                else:
                    a(f"v_mfma_f32_32x32x16_bf16 {vr(acc, 16)}, {W}, {U}, {c_}")
    a("s_barrier")
    stamp(a, 2)
    if PROF:
        a("s_memtime s[74:75]")
    reads(0)
    for t in range(36):
        if t < 35:
            if (t + 1) % 4 == 0:
                a("s_barrier")
                if t + 1 in (4, 16):
                    stamp(a, {4: 3, 16: 4}[t + 1])
            reads(t + 1)
            a("s_waitcnt lgkmcnt(6)")
        else:
            a("s_waitcnt lgkmcnt(0)")
        comp(t)


def rstd(a):
    stamp(a, 5)
    if PROF:
        a("s_memtime s[84:85]")
    a(f"""
    s_barrier
    ds_read_b32 v{T}, v14
    ds_read_b32 v{T + 1}, v14 offset:512
    ds_read_b32 v{T + 2}, v14 offset:1024
    ds_read_b32 v{T + 3}, v14 offset:1536
    v_mov_b32 v4, {f32bits(EPS):#x}
    s_waitcnt lgkmcnt(2)
    v_add_f32 v{T}, v{T}, v{T + 1}
    s_waitcnt lgkmcnt(0)
    v_add_f32 v{T + 2}, v{T + 2}, v{T + 3}
    v_add_f32 v{T + 2}, v{T}, v{T + 2}
    v_fmamk_f32 v{T + 2}, v{T + 2}, {f32bits(1 / 576):#x}, v4
    v_rsq_f32 v{T + 2}, v{T + 2}
    s_nop 0
    v_mov_b32 v{T + 4}, v{T + 2}
    v_mov_b32 v{T + 5}, v{T + 2}
    v_permlane32_swap_b32 v{T + 4}, v{T + 5}
    """)


def loader(a):
    srd(a, 24, 20, 144 * 16384, UB)
    srd(a, 28, 20, 72 * 32768, WP)
    for c in range(INIT):
        dma(a, c)
    stamp(a, 1)
    a(f"""
    v_add_u32 v8, s50, v5
    v_add_u32 v9, {2 * SLOT}, v8
    v_add_u32 v10, {4 * SLOT}, v8
    s_cmp_eq_u32 s40, 0
    s_cselect_b32 s51, 0, 0xffff0000
    s_mov_b32 s52, 0xffff0000
    v_mov_b32 v16, 0
    v_mov_b32 v17, 0
    v_mov_b32 v18, 0
    v_mov_b32 v19, 0
    s_lshl_b32 s41, s40, 9
    s_add_u32 s41, s41, {PART}
    v_lshlrev_b32 v14, 3, v1
    v_add_u32 v14, s41, v14
    """)
    issued = INIT
    for c in range(9):
        a(f"s_waitcnt vmcnt({8 * (issued - c - 1)})\n s_barrier")
        sl = c % NSL
        for q in range(4):
            a(f"ds_read_b128 {vr(32 + 4 * q, 4)}, v{8 + (sl >> 1)} offset:{(sl & 1) * SLOT + q * 1024}")
        if issued - c <= 3 and issued < 9:
            dma(a, issued)
            issued += 1
        for q in range(4):
            a(f"s_waitcnt lgkmcnt({3 - q})")
            for d in range(4):
                r = 32 + 4 * q + d
                m = "s51" if (c == 0 and q == 0 and d % 2 == 0) else "s52"
                a(f"""
                v_lshlrev_b32 v{20 + d}, 16, v{r}
                v_and_b32 v{r}, {m}, v{r}
                """)
            for d in range(4):
                r = 32 + 4 * q + d
                a(f"""
                v_fmac_f32 v{16 + (d >> 1)}, v{20 + d}, v{20 + d}
                v_fmac_f32 v{18 + (d >> 1)}, v{r}, v{r}
                """)
    a(f"""
    v_add_f32 v16, v16, v18
    v_add_f32 v17, v17, v19
    ds_write_b64 v14, v[16:17]
    s_waitcnt lgkmcnt(0)
    s_barrier
    s_endpgm
    """)


def kernels():
    a = A()
    n = "qkv"
    prologue(a, 256, n)
    a(f"""
    s_and_b32 s41, s2, 7
    s_lshr_b32 s42, s2, 3
    s_lshr_b32 s46, s41, 1
    s_lshl_b32 s46, s46, 2
    s_and_b32 s43, s42, 3
    s_add_u32 s46, s46, s43
    s_and_b32 s47, s41, 1
    s_lshl_b32 s47, s47, 3
    s_lshr_b32 s43, s42, 2
    s_add_u32 s47, s47, s43
    s_cmp_lt_u32 s40, 4
    s_cbranch_scc1 {n}_comp
    s_and_b32 s40, s40, 3
    v_lshlrev_b32 v5, 4, v1
    s_lshl_b32 s48, s40, 16
    s_lshl_b32 s41, s46, 10
    s_add_u32 s48, s48, s41
    s_lshl_b32 s49, s40, 16
    s_lshl_b32 s41, s47, 11
    s_add_u32 s49, s49, s41
    s_lshl_b32 s50, s40, 12
    s_waitcnt lgkmcnt(0)
    """)
    loader(a)
    a(f"""
    {n}_comp:
    s_setprio 2
    s_and_b32 s44, s40, 1
    s_lshr_b32 s45, s40, 1
    s_waitcnt lgkmcnt(0)
    """)
    srd(a, 32, 20, 32 * 65536, QI)
    srd(a, 36, 20, 32 * KVS, KV)
    srd(a, 52, 20, 32 * 8192, QX)
    srd(a, 56, 20, 32 * 256, KMX)
    a(f"""
    s_lshl_b32 s41, s44, 6
    v_add_u32 v15, s41, v2
    v_lshl_add_u32 v8, v3, 8, v15
    v_lshlrev_b32 v8, 3, v8
    v_add_u32 v9, {2 * SLOT}, v8
    v_add_u32 v10, {4 * SLOT}, v8
    s_lshl_b32 s41, s45, 6
    v_lshl_add_u32 v11, v3, 7, v2
    v_add_u32 v11, s41, v11
    v_lshlrev_b32 v11, 4, v11
    v_add_u32 v11, 16384, v11
    v_add_u32 v12, {2 * SLOT}, v11
    v_add_u32 v13, {4 * SLOT}, v11
    s_lshl_b32 s41, s44, 8
    s_add_u32 s41, s41, {PART}
    v_lshl_add_u32 v14, v1, 2, s41
    s_mul_i32 s60, s47, {2 * KVS}
    s_mul_i32 s41, s46, {CH}
    s_add_u32 s60, s60, s41
    s_lshl_b32 s61, s46, 1
    s_add_u32 s61, s61, s44
    s_lshl_b32 s61, s61, 3
    s_lshl_b32 s41, s47, 9
    s_add_u32 s61, s61, s41
    s_cmp_eq_u32 s45, 0
    s_cbranch_scc0 {n}_ch1
    """)
    mainloop(a, 0)
    rstd(a)
    a(f"""
    v_lshlrev_b32 v6, 4, v15
    v_lshl_add_u32 v7, v3, 11, v6
    v_lshl_add_u32 v6, v3, 15, v6
    s_lshl_b32 s62, s47, 17
    s_lshl_b32 s41, s46, 11
    s_add_u32 s62, s62, s41
    """)
    P = FRG
    for x in range(2):
        a(f"s_add_u32 s63, s62, {x * 65536}\n s_add_u32 s64, s60, {x * KVS}")
        for tp in range(2):
            acc = AC + 32 * x + 16 * tp
            p = P + 8 * (2 * x + tp)
            for q in range(8):
                a(f"v_pk_mul_f32 {vr(acc + 2 * q, 2)}, {vr(acc + 2 * q, 2)}, {vr(T + 4, 2)} op_sel:[0,{tp}] op_sel_hi:[1,{tp}]")
                a(f"v_cvt_pk_bf16_f32 v{p + q}, v{acc + 2 * q}, v{acc + 2 * q + 1}")
            a(f"""
            buffer_store_dwordx4 {vr(p, 4)}, v6, s[32:35], s63 offen offset:{tp * 512}
            buffer_store_dwordx4 {vr(p + 4, 4)}, v7, s[36:39], s64 offen offset:{tp * 512}
            """)
            nn = T + 8 + 2 * x + tp
            for q in range(4):
                cc = "0" if q == 0 else f"v{nn}"
                a(f"v_dot2_f32_bf16 v{nn}, v{p + 4 + q}, v{p + 4 + q}, {cc}")
        a(f"""
        v_permlane32_swap_b32 v{T + 8 + 2 * x}, v{T + 9 + 2 * x}
        v_add_f32 v{T + 8 + 2 * x}, v{T + 8 + 2 * x}, v{T + 9 + 2 * x}
        """)
    a(f"""
    v_permlane32_swap_b32 v{T + 8}, v{T + 10}
    v_max_f32 v{T + 8}, v{T + 8}, v{T + 10}
    """)
    red32(a, T + 8, T + 9)
    a(f"""
    v_lshlrev_b32 v6, 8, v3
    v_cmp_eq_u32 vcc, 0, v2
    s_and_saveexec_b64 s[66:67], vcc
    buffer_store_dword v{T + 8}, v6, s[56:59], s61 offen
    s_endpgm
    {n}_ch1:
    """)
    mainloop(a, 1)
    rstd(a)
    RS = T + 16
    a(f"""
    s_lshl_b32 s41, s44, 8
    v_lshl_add_u32 v6, v1, 2, s41
    ds_write_b32 v6, v{T + 2}
    v_lshl_add_u32 v6, v3, 4, s41
    s_waitcnt lgkmcnt(0)
    """)
    for tp in range(2):
        for g in range(4):
            a(f"ds_read_b128 {vr(RS + 16 * tp + 4 * g, 4)}, v6 offset:{(32 * tp + 8 * g) * 4}")
    a(f"""
    v_lshlrev_b32 v6, 2, v15
    v_mul_u32_u24 v4, {KVS}, v3
    v_add_u32 v7, v4, v6
    v_lshl_add_u32 v6, v3, 13, v6
    s_lshl_b32 s62, s47, 14
    s_lshl_b32 s41, s46, 9
    s_add_u32 s62, s62, s41
    v_lshrrev_b32 v8, 4, v15
    v_bfe_u32 v9, v15, 2, 1
    v_lshl_add_u32 v8, v8, 1, v9
    v_mul_u32_u24 v8, {VP}, v8
    v_bfe_u32 v9, v15, 3, 1
    v_lshl_add_u32 v8, v9, 3, v8
    v_and_b32 v9, 3, v15
    v_lshl_add_u32 v8, v9, 1, v8
    v_add_u32 v8, v8, v4
    v_mov_b32 v9, 0x3f80
    s_add_u32 s63, s60, {CH_K2}
    s_add_u32 s64, s60, {CH_V}
    """)
    for tp in range(2):
        acc = AC + 32 + 16 * tp
        p = P + 4 * tp
        for q in range(3):
            a(f"v_pk_mul_f32 {vr(acc + 2 * q, 2)}, {vr(acc + 2 * q, 2)}, {vr(T + 4, 2)} op_sel:[0,{tp}] op_sel_hi:[1,{tp}]")
            a(f"v_cvt_pk_bf16_f32 v{p + q}, v{acc + 2 * q}, v{acc + 2 * q + 1}")
        o = tp * 4 * VP
        a(f"""
        buffer_store_dword v{p}, v6, s[52:55], s62 offen offset:{tp * 128}
        buffer_store_dword v{p + 1}, v7, s[36:39], s63 offen offset:{tp * 128}
        buffer_store_short v{p + 2}, v8, s[36:39], s64 offen offset:{o + 256}
        buffer_store_short_d16_hi v{p + 2}, v8, s[36:39], s64 offen offset:{o + 272}
        buffer_store_short v9, v8, s[36:39], s64 offen offset:{o + 288}
        v_dot2_f32_bf16 v{T + 8 + tp}, v{p + 1}, v{p + 1}, 0
        """)
    a(f"v_max_f32 v{T + 8}, v{T + 8}, v{T + 9}")
    red32(a, T + 8, T + 9)
    a(f"""
    v_lshrrev_b32 v6, 4, v2
    v_mul_u32_u24 v6, {KVS}, v6
    v_and_b32 v7, 15, v2
    v_lshl_add_u32 v6, v7, 4, v6
    s_lshl_b32 s41, s44, 3
    v_add_u32 v7, s41, v3
    v_mul_u32_u24 v7, {VP}, v7
    v_add_u32 v6, v6, v7
    s_waitcnt lgkmcnt(0)
    """)
    for tp in range(2):
        acc = AC + 16 * tp
        p = P + 8 + 8 * tp
        for q in range(8):
            a(f"v_pk_mul_f32 {vr(acc + 2 * q, 2)}, {vr(acc + 2 * q, 2)}, {vr(RS + 16 * tp + 2 * q, 2)}")
            a(f"v_cvt_pk_bf16_f32 v{p + q}, v{acc + 2 * q}, v{acc + 2 * q + 1}")
        for m in range(2):
            a(f"buffer_store_dwordx4 {vr(p + 4 * m, 4)}, v6, s[36:39], s64 offen offset:{(4 * tp + 2 * m) * VP}")
    a(f"""
    v_lshlrev_b32 v6, 8, v3
    v_cmp_eq_u32 vcc, 0, v2
    s_and_saveexec_b64 s[66:67], vcc
    buffer_store_dword v{T + 8}, v6, s[56:59], s61 offen offset:4
    {n}_exit:
    s_endpgm
    """)
    return [("qkv_kernel", a.text(), 160)]


def launch():
    return ("qkv_kernel", 256, 512, QKV_LDS)
```

```python
import sys, importlib, os
import numpy as np
from common import *
import k_gemm

NAME = "interleave_layers__spectral_gfnet__softmax_full_mha__prompt"
HDR = open(f"cdna_kernels/{NAME}.s.ref").read().split("; Override launch")[0]


def tables():
    L = []
    for i in range(N):
        L.append(f".set cs{i}, 0x{bf16bits(np.sqrt(2 / N) * np.cos(2 * np.pi * i / N)):04x}")
    L.append(f".set cs576, 0x{bf16bits(1 / np.sqrt(N)):04x}")
    L.append(f".set cs577, 0x{bf16bits(-1 / np.sqrt(N)):04x}")
    L.append(".altmacro")
    L.append(""".macro E8 a,b,c,d,e,f,g,h
.short cs\\a,cs\\b,cs\\c,cs\\d,cs\\e,cs\\f,cs\\g,cs\\h
.endm""")
    L.append(""".p2align 8
T2:
.set d,0
.rept 576
E8 %(576+(d%2)),576,%(d),%((d+144)%576),%((2*d)%576),%((2*d+144)%576),%((3*d)%576),%((3*d+144)%576)
.set d,d+1
.endr
.set kb,1
.rept 71
.set d,0
.rept 576
.set x,(4*kb*d)%576
E8 %(x),%((x+144)%576),%((x+d)%576),%((x+d+144)%576),%((x+2*d)%576),%((x+2*d+144)%576),%((x+3*d)%576),%((x+3*d+144)%576)
.set d,d+1
.endr
.set kb,kb+1
.endr
.noaltmacro""")
    return "\n".join(L) + "\n"


def build(upto=9):
    ks = []
    launches = []
    mods = {}
    ks.append(("p0_kernel", k_gemm.k_p0(), 256))
    launches.append(("p0_kernel", k_gemm.P0_GRID, 256, k_gemm.P0_LDS))
    if upto > 1:
        import k_fft
        ks += k_fft.kernels()
        launches.append(k_fft.launch(1))
    if upto > 2:
        import k_qkv
        ks += k_qkv.kernels()
        launches.append(k_qkv.launch())
    if upto > 3:
        import k_attn
        ks += k_attn.kernels()
        launches.append(k_attn.launch())
    if upto > 4:
        ks.append(("p4_kernel", k_gemm.k_p4(), 256))
        launches.append(("p4_kernel", 192, 256, k_gemm.GEMM_LDS))
    if upto > 5:
        launches.append(k_fft.launch(5))
    if upto > 6:
        launches.append(k_qkv.launch())
    if upto > 7:
        launches.append(k_attn.launch())
    if upto > 8:
        ks.append(("p8_kernel", k_gemm.k_p8(), 256))
        launches.append(("p8_kernel", 192, 256, k_gemm.GEMM_LDS))
    out = HDR
    for (k, g, b, l) in launches:
        out += f"; @launch kernel={k} grid=({g},1,1) block=({b},1,1) lds={l}\n"
    out += '.amdgcn_target "amdgcn-amd-amdhsa--gfx950"\n.text\n'
    for (k, t, v) in ks:
        out += khead(k) + (t.replace("s_endpgm", "s_branch prof_end") if PROF else t)
    if PROF:
        out += prof_tail()
    out += '.section .rodata,"a"\n'
    for (k, t, v) in ks:
        out += kd(k, v)
    out += tables()
    return out


if __name__ == "__main__":
    upto = int(sys.argv[1]) if len(sys.argv) > 1 else 9
    dst = sys.argv[2] if len(sys.argv) > 2 else f"cdna_kernels/{NAME}.s"
    txt = build(upto)
    if os.environ.get('ALIGN'):
        import align8
        txt = align8.align8(txt)
    open(dst, "w").write(txt)
    print("wrote", dst)
```
